```python
import torch

def _softmax(x, axis=-1):
    return torch.softmax(x, dim=axis)

def _gelu(x):
    return torch.nn.functional.gelu(x, approximate='tanh')

def _silu(x):
    return torch.nn.functional.silu(x)

def _sigmoid(x):
    return torch.sigmoid(x)

def _layernorm(x, axis=-1, eps=1e-05):
    m = x.mean(dim=axis, keepdim=True)
    v = x.var(dim=axis, keepdim=True, unbiased=False)
    return (x - m) / torch.sqrt(v + eps)

def _scatter_add(tgt, idx, src, axis=0):
    return tgt.clone().index_add_(axis, idx, src)

def _segment_sum(src, seg, n):
    out = torch.zeros((n,) + src.shape[1:], dtype=src.dtype)
    return out.index_add_(0, seg, src)

def _pad(x, pw):
    flat = tuple((v for pair in reversed(pw) for v in pair))
    return torch.nn.functional.pad(x, flat)
kernel_name = 'sequential_preLN__memory_aug_recurrent_mem_tr__mixer_token_mlp__prompt'

def setup_inputs():

    _w = lambda a: (lambda t: t.to(torch.bfloat16) if t.is_floating_point() else t)(torch.as_tensor(a))

    def _A_setup():
        B, S, Dm = (1, 2048, 448)
        H, Dh = (16, 256)
        M, seg = (8, 32)
        seg = min(seg, S)
        S = S // seg * seg
        return {'x': _w((lambda *s: torch.randn(*s, dtype=torch.bfloat16) * 0.05)(B, S, Dm)), 'mem0': _w((lambda *s: torch.randn(*s, dtype=torch.bfloat16) * 0.2)(B, M, Dm)), 'Wq': _w((lambda *s: torch.randn(*s, dtype=torch.bfloat16) * 1.6)(Dm, H, Dh) * Dm ** (-0.5)), 'Wk': _w((lambda *s: torch.randn(*s, dtype=torch.bfloat16) * 1.6)(Dm, H, Dh) * Dm ** (-0.5)), 'Wv': _w((lambda *s: torch.randn(*s, dtype=torch.bfloat16) * 0.2)(Dm, H, Dh) * Dm ** (-0.5)), 'Wo': _w((lambda *s: torch.randn(*s, dtype=torch.bfloat16) * 0.2)(H, Dh, Dm) * (H * Dh) ** (-0.5)), 'seg_len': seg}
    _A_in = _A_setup()

    def _B_setup():
        B, S, D, F = (1, 2048, 448, 1792)
        return {'x': _w((lambda *s: torch.randn(*s, dtype=torch.bfloat16) * 0.05)(B, S, D)), 'w1': _w((lambda *s: torch.randn(*s, dtype=torch.bfloat16) * 0.4)(S, F) * S ** (-0.5)), 'b1': _w((lambda *s: torch.randn(*s, dtype=torch.bfloat16) * 3.2)(F) * 0.02), 'w2': _w((lambda *s: torch.randn(*s, dtype=torch.bfloat16) * 0.4)(F, S) * F ** (-0.5)), 'b2': _w((lambda *s: torch.randn(*s, dtype=torch.bfloat16) * 1.6)(S) * 0.02)}
    _B_in = _B_setup()
    return {'A_x': _A_in['x'], 'A_mem0': _A_in['mem0'], 'A_Wq': _A_in['Wq'], 'A_Wk': _A_in['Wk'], 'A_Wv': _A_in['Wv'], 'A_Wo': _A_in['Wo'], 'A_seg_len': _A_in['seg_len'], 'B_x': _B_in['x'], 'B_w1': _B_in['w1'], 'B_b1': _B_in['b1'], 'B_w2': _B_in['w2'], 'B_b2': _B_in['b2']}

def reference(A_x, A_mem0, A_Wq, A_Wk, A_Wv, A_Wo, A_seg_len, B_x, B_w1, B_b1, B_w2, B_b2):

    def _A_ref(x, mem0, Wq, Wk, Wv, Wo, seg_len):
        B, S, Dm = x.shape
        H, Dh = (Wq.shape[1], Wq.shape[2])
        M = mem0.shape[1]
        scale = Dh ** (-0.5)
        n_seg = S // seg_len
        L = M + seg_len
        idx = torch.arange(L)
        mask = (idx[:, None] < M) | (idx[:, None] >= idx[None, :])
        mem = mem0
        outs = []
        for s in range(n_seg):
            xs = x[:, s * seg_len:(s + 1) * seg_len, :].clone()
            h = torch.concatenate([mem, xs], axis=1)
            q = torch.einsum('btd,dhe->bhte', h, Wq)
            k = torch.einsum('btd,dhe->bhte', h, Wk)
            v = torch.einsum('btd,dhe->bhte', h, Wv)
            scores = torch.einsum('bhqe,bhke->bhqk', q, k) * scale
            scores = torch.where(mask[None, None], scores, -1000000000.0)
            p = _softmax(scores, axis=-1)
            o = torch.einsum('bhqk,bhke->bhqe', p, v)
            o = torch.einsum('bhte,hed->btd', o, Wo)
            mem = o[:, :M, :].clone()
            outs.append(o[:, M:, :])
        return torch.concatenate(outs, axis=1)

    def _B_ref(x, w1, b1, w2, b2):
        B, S, D = x.shape
        h = _layernorm(x, axis=-1)
        u = torch.einsum('bsd,sf->bdf', h, w1) + b1
        u = _gelu(u)
        y = torch.einsum('bdf,fs->bds', u, w2) + b2
        return (lambda x, *d: x.permute(*d))(y, 0, 2, 1)
    x = A_x
    h = x + _A_ref(_layernorm(x, axis=-1), A_mem0, A_Wq, A_Wk, A_Wv, A_Wo, A_seg_len)
    h2 = h + _B_ref(_layernorm(h, axis=-1), B_w1, B_b1, B_w2, B_b2)
    return h2
```

```python
import re

class Asm:
    def __init__(self):
        self.lines = []
    def __call__(self, s=''):
        for ln in s.split('\n'):
            ln = ln.strip()
            if ln: self.lines.append(ln)
    def label(self, name): self.lines.append(name + ':')
    def text(self): return '\n'.join(self.lines) + '\n'

def vr(b, n=1): return f'v{b}' if n == 1 else f'v[{b}:{b+n-1}]'
def ar(b, n=1): return f'a{b}' if n == 1 else f'a[{b}:{b+n-1}]'
def sr(b, n=1): return f's{b}' if n == 1 else f's[{b}:{b+n-1}]'
def rr(r, n=1):
    return vr(r, n) if r < 256 else ar(r - 256, n)

_reg_re = re.compile(r'^(-|\|)?(abs\(|neg\()?([vas])(\d+|\[(\d+):(\d+)\])\)?\|?$')
def parse_reg(tok):
    t = tok.strip()
    if t in ('vcc', 'vcc_lo', 'vcc_hi'): return {('s', 'vcc')}
    if t in ('exec', 'exec_lo', 'exec_hi'): return {('s', 'exec')}
    if t == 'm0': return {('s', 'm0')}
    if t == 'scc': return set()
    m = _reg_re.match(t)
    if not m: return set()
    k = m.group(3)
    if m.group(5) is not None:
        return {(k, i) for i in range(int(m.group(5)), int(m.group(6)) + 1)}
    return {(k, int(m.group(4)))}

TRANS = ('v_exp_f32', 'v_log_f32', 'v_rcp_f32', 'v_rsq_f32', 'v_sqrt_f32', 'v_sin_f32', 'v_cos_f32', 'v_rcp_iflag_f32')
def mfma_passes(op):
    if '32x32x' in op: return 8
    if '16x16x' in op: return 4
    if '4x4x' in op: return 2
    raise ValueError(op)

class Ins:
    __slots__ = ('text','op','ops','mods','kind','w','r','isdpp','srcc','sa','sb')
    def __init__(self, text):
        self.text = text
        t = text.split(';')[0].split('//')[0].strip()
        parts = t.split(None, 1)
        self.op = parts[0]
        rest = parts[1] if len(parts) > 1 else ''
        ops = []; cur = ''; depth = 0
        for ch in rest:
            if ch in '[(': depth += 1
            if ch in '])': depth -= 1
            if ch == ',' and depth == 0: ops.append(cur.strip()); cur = ''
            else: cur += ch
        if cur.strip(): ops.append(cur.strip())
        mods = ''
        if ops:
            sp = ops[-1].split(None, 1)
            if len(sp) > 1 and not ops[-1].startswith('hwreg'):
                ops[-1] = sp[0]; mods = sp[1]
        self.ops = ops; self.mods = mods
        op = self.op
        self.w = set(); self.r = set(); self.isdpp = ('row_' in mods or 'quad_perm' in mods or 'wave_' in mods or op.endswith('_dpp'))
        self.srcc = set(); self.sa = set(); self.sb = set()
        R = [parse_reg(o) for o in ops]
        if op.startswith('v_mfma'):
            self.kind = 'mfma'; self.w = R[0]; self.sa = R[1]; self.sb = R[2]; self.srcc = R[3]; self.r = R[1] | R[2] | R[3]
        elif op.startswith('v_smfmac'):
            self.kind = 'mfma'; self.w = R[0]; self.sa = R[1]; self.sb = R[2] | R[3]; self.srcc = R[0]; self.r = R[0] | R[1] | R[2] | R[3]
        elif op.startswith('v_'):
            self.kind = 'valu'
            if op.startswith('v_cmpx'):
                self.w = R[0] | {('s', 'exec')}; self.r = set().union(*R[1:])
            elif op.startswith('v_cmp'):
                self.w = R[0]; self.r = set().union(*R[1:])
            elif op.startswith(('v_add_co', 'v_sub_co', 'v_subrev_co')):
                self.w = R[0] | R[1]; self.r = set().union(*R[2:])
            elif op.startswith(('v_addc_co', 'v_subb_co')):
                self.w = R[0] | R[1]; self.r = set().union(*R[2:])
            elif op.startswith(('v_permlane16_swap', 'v_permlane32_swap', 'v_swap')):
                self.w = R[0] | R[1]; self.r = R[0] | R[1]
            elif op.startswith(('v_fmac', 'v_mac', 'v_dot2c', 'v_pk_fmac', 'v_writelane')):
                self.w = R[0]; self.r = set().union(*R)
            elif op == 'v_nop':
                pass
            else:
                self.w = R[0]; self.r = set().union(*R[1:]) if len(R) > 1 else set()
                if op.startswith('v_cndmask') and len(ops) == 3: self.r |= {('s', 'vcc')}
                if self.isdpp and 'bound_ctrl' not in mods: self.r |= R[0]
        elif op.startswith(('global_', 'buffer_', 'flat_', 'scratch_')):
            self.kind = 'vmem'
            allr = set().union(*R) if R else set()
            if 'lds' in mods.split() or '_lds_' in op:
                self.r = allr | {('s', 'm0')}
            elif '_load' in op:
                self.w = R[0]; self.r = set().union(*R[1:])
            elif '_atomic' in op:
                if 'sc0' in mods.split():
                    self.w = R[0]; self.r = set().union(*R[1:])
                else: self.r = allr
            else:
                self.r = allr
        elif op.startswith('ds_'):
            self.kind = 'ds'
            if op.startswith(('ds_read', 'ds_bpermute', 'ds_permute', 'ds_swizzle')) or '_rtn' in op:
                self.w = R[0]; self.r = set().union(*R[1:])
            else: self.r = set().union(*R)
        elif op.startswith('s_'):
            self.kind = 'salu'
            if op.startswith(('s_cmp', 's_cbranch', 's_branch', 's_waitcnt', 's_nop', 's_barrier', 's_sleep', 's_endpgm', 's_setprio', 's_bitcmp')):
                self.r = set().union(*R) if R else set()
            else:
                if R: self.w = R[0]; self.r = set().union(*R[1:]) if len(R) > 1 else set()
                if 'saveexec' in op: self.w |= {('s', 'exec')}; self.r |= {('s', 'exec')}
        else:
            raise ValueError('unknown op ' + text)
    def store_wide(self):
        return self.kind == 'vmem' and not self.w and ('_store' in self.op) and (self.op.endswith('x4') or self.op.endswith('x3'))
    def store_data(self):
        if self.op.startswith('buffer_'): return parse_reg(self.ops[0])
        return parse_reg(self.ops[1])

def isv(regs): return {x for x in regs if x[0] in 'va'}
def iss(regs): return {x for x in regs if x[0] == 's'}

def need(prod, cons):
    n = 0
    pw = prod.w
    if prod.kind == 'valu':
        vw = isv(pw); sw = iss(pw)
        if cons.kind == 'mfma' and (vw & cons.r): n = max(n, 2)
        if cons.kind == 'mfma' and (('s', 'exec') in pw): n = max(n, 4)
        if cons.kind == 'valu':
            if cons.isdpp and (vw & cons.r): n = max(n, 2)
            if cons.op.startswith('v_permlane') and (vw & cons.r): n = max(n, 2)
            if cons.op.startswith(('v_readlane', 'v_readfirstlane')) and (vw & cons.r): n = max(n, 1)
            if sw & cons.r: n = max(n, 2)
            if cons.op.startswith(('v_readlane', 'v_writelane')) and (sw & cons.r): n = max(n, 4)
            if prod.op.startswith(TRANS) and (vw & cons.r) and not cons.op.startswith(TRANS): n = max(n, 1)
            if prod.op.startswith(TRANS) and (vw & cons.r): n = max(n, 1)
            if ('s', 'exec') in pw: n = max(n, 5 if cons.isdpp else 4)
        if cons.kind == 'vmem' and (sw & cons.r): n = max(n, 5)
        if cons.kind == 'salu' and (sw & cons.r): n = max(n, 1)
        if prod.op.startswith(TRANS) and cons.kind in ('vmem', 'ds') and (vw & cons.r): n = max(n, 1)
    elif prod.kind == 'mfma':
        p = mfma_passes(prod.op)
        T = {2: (2, 4, 5, 5), 4: (0, 6, 8, 8), 8: (0, 10, 12, 12), 16: (0, 18, 20, 20)}[p]
        if cons.kind == 'mfma':
            if pw & cons.srcc:
                same = (cons.srcc == pw) and mfma_passes(cons.op) == p
                n = max(n, T[0] if same else T[1])
            if pw & (cons.sa | cons.sb): n = max(n, T[2])
            if (pw & cons.w) and not (pw & cons.srcc): n = max(n, T[1])
        elif cons.kind in ('valu', 'vmem', 'ds'):
            if pw & (cons.r | cons.w): n = max(n, T[3])
        if cons.kind == 'valu' and (prod.srcc & cons.w): n = max(n, {2: 1, 4: 3, 8: 7, 16: 15}[p])
    elif prod.kind == 'vmem':
        if prod.store_wide() and (prod.store_data() & cons.w):
            n = max(n, 2 if cons.kind == 'valu' else 1)
    elif prod.kind == 'salu':
        if ('s', 'm0') in pw and cons.kind == 'vmem' and ('s', 'm0') in cons.r: n = max(n, 1)
    return n

def states(ins):
    if ins.op == 's_nop': return int(ins.ops[0], 0) + 1
    return 1

MAXW = 20
def fix_hazards(text, verbose=False):
    raw = [l for l in text.split('\n')]
    items = []
    for l in raw:
        s = l.strip()
        if not s or s.startswith(';') or s.startswith('.') or s.startswith('//'):
            items.append(('raw', l)); continue
        if s.endswith(':') and ' ' not in s:
            items.append(('label', s[:-1])); continue
        items.append(('ins', Ins(s)))
    labels = {}
    def relabel():
        labels.clear()
        for i, it in enumerate(items):
            if it[0] == 'label': labels[it[1]] = i
    def required(hist, cons):
        d = 0; n = 0
        for p in reversed(hist):
            nn = need(p, cons) - d
            if nn > n: n = nn
            d += states(p)
            if d >= MAXW: break
        return n
    total = 0
    changed = True
    rounds = 0
    while changed:
        changed = False; rounds += 1
        relabel()
        i = 0; hist = []
        while i < len(items):
            it = items[i]
            if it[0] == 'ins':
                ins = it[1]
                n = required(hist, ins)
                if n > 0:
                    nop = Ins(f's_nop {n-1}')
                    items.insert(i, ('ins', nop)); hist.append(nop); total += n; changed = True
                    relabel(); i += 1
                    continue
                hist.append(ins); hist = hist[-MAXW-2:]
                if ins.op.startswith(('s_cbranch', 's_branch')):
                    tgt = ins.ops[0]
                    if tgt in labels:
                        h2 = list(hist); j = labels[tgt]; d = 0; worst = 0
                        while j < len(items) and d < MAXW:
                            jt = items[j]
                            if jt[0] == 'ins':
                                c = jt[1]
                                nn = required(h2, c)
                                if nn > worst: worst = nn
                                if nn > 0: break
                                h2.append(c); d += states(c)
                                if c.op.startswith('s_branch') or c.op == 's_endpgm': break
                            j += 1
                        if worst > 0:
                            nop = Ins(f's_nop {worst-1}')
                            items.insert(i, ('ins', nop)); total += worst; changed = True
                            relabel(); hist.insert(len(hist)-1, nop); i += 1
                    if ins.op == 's_branch': hist = []
                if ins.op == 's_endpgm': hist = []
            i += 1
        if rounds > 50: raise RuntimeError('hazard pass does not converge')
    out = []
    for it in items:
        if it[0] == 'raw': out.append(it[1])
        elif it[0] == 'label': out.append(it[1] + ':')
        else: out.append('  ' + it[1].text)
    if verbose: print('inserted wait states:', total)
    return '\n'.join(out) + '\n'

def check_waitcnt(text):
    probs = []
    vm = []
    lg = []
    for l in text.split('\n'):
        s = l.strip()
        if not s or s.startswith((';', '.', '//')) or (s.endswith(':') and ' ' not in s): continue
        ins = Ins(s)
        if ins.op == 's_waitcnt':
            m = re.search(r'vmcnt\((\d+)\)', s)
            if m:
                n = int(m.group(1)); vm = vm[len(vm)-n:] if n < len(vm) else vm
                if n == 0: vm = []
            m = re.search(r'lgkmcnt\((\d+)\)', s)
            if m:
                n = int(m.group(1))
                if n == 0: lg = []
                elif n < len(lg): lg = lg[len(lg)-n:]
            continue
        if ins.op in ('s_branch', 's_endpgm'):
            vm = []; lg = []; continue
        touched = ins.r | ins.w
        for dst, t in vm + lg:
            if dst & touched: probs.append(f'{s}   touches pending result of   {t}')
        if ins.kind == 'vmem': vm.append((set(ins.w), s))
        elif ins.kind == 'ds': lg.append((set(ins.w), s))
        elif ins.op.startswith(('s_load', 's_memtime', 's_memrealtime', 's_buffer_load')):
            lg.append((set(ins.w), s));
            if 'x2' in ins.op or 'x4' in ins.op or 'x8' in ins.op or 'x16' in ins.op or 'time' in ins.op: lg.append((set(), s))
    return probs
```

```python
from asmlib import *
from layout import WS
NSTEP=63
TIMEOUT=400000

def wreg(i):
    return 256+8*i if i<32 else 120+8*(i-32)
def W(t,ks): return rr(wreg(t*7+ks),8)

def srd(a, s, base, nbytes):
    a(f'''s_mov_b32 s{s}, s{base}
    s_mov_b32 s{s+1}, s{base+1}
    s_mov_b32 s{s+2}, {nbytes}
    s_mov_b32 s{s+3}, 0x00020000''')

def elect(a, lds_tmp, pfx='L_ch'):
    a(f'''
    s_cmp_ge_u32 s2, 256
    s_cbranch_scc1 {pfx}_end
    s_load_dwordx2 s[4:5], s[0:1], 112
    s_load_dwordx2 s[6:7], s[0:1], 104
    s_getreg_b32 s12, hwreg(HW_REG_XCC_ID, 0, 4)
    v_lshrrev_b32 v1, 6, v0
    v_and_b32 v0, 63, v0
    v_readfirstlane_b32 s13, v1
    s_waitcnt lgkmcnt(0)''')
    srd(a, 8, 4, '0x10000000')
    a(f'''
    s_cmp_lg_u32 s13, 0
    s_cbranch_scc1 {pfx}_el_wait
    s_mov_b64 s[18:19], exec
    s_mov_b64 exec, 1
    s_lshl_b32 s16, s12, 2
    v_mov_b32 v1, s16
    v_mov_b32 v2, 1
    global_atomic_add v3, v1, v2, s[6:7] sc0
    s_waitcnt vmcnt(0)
    v_readfirstlane_b32 s14, v3
    s_cmp_ge_u32 s14, 32
    s_cbranch_scc1 {pfx}_el_no
    v_mov_b32 v1, 64
    s_cmp_lg_u32 s14, 31
    s_cbranch_scc1 {pfx}_el_poll0
    s_add_u32 s16, s12, 1
    v_mov_b32 v4, s16
    v_mov_b32 v5, 0
    global_atomic_cmpswap v1, v[4:5], s[6:7]
{pfx}_el_poll0:
    s_mov_b32 s17, 0
{pfx}_el_poll:
    global_load_dword v3, v1, s[6:7] sc1
    s_add_u32 s17, s17, 1
    s_cmp_gt_u32 s17, {TIMEOUT}
    s_cbranch_scc1 {pfx}_el_no
    s_waitcnt vmcnt(0)
    v_readfirstlane_b32 s16, v3
    s_cmp_eq_u32 s16, 0
    s_cbranch_scc1 {pfx}_el_poll
    s_sub_u32 s16, s16, 1
    s_cmp_eq_u32 s16, s12
    s_cbranch_scc1 {pfx}_el_yes
{pfx}_el_no:
    s_mov_b32 s14, 255
{pfx}_el_yes:
    v_mov_b32 v1, {lds_tmp}
    v_mov_b32 v2, s14
    ds_write_b32 v1, v2
    s_waitcnt vmcnt(0) lgkmcnt(0)
    s_mov_b64 exec, s[18:19]
{pfx}_el_wait:
    s_barrier
    v_mov_b32 v1, {lds_tmp}
    ds_read_b32 v2, v1
    s_waitcnt lgkmcnt(0)
    v_readfirstlane_b32 s14, v2
    s_cmp_ge_u32 s14, 32
    s_cbranch_scc1 {pfx}_end
    ''')

def load_weights(a, s_tau0, s_base):
    for t in range(7):
        a(f'''s_add_u32 s16, s{s_tau0}, {t}
        s_lshr_b32 s17, s16, 1
        s_mul_i32 s17, s17, {56*512}
        s_and_b32 s16, s16, 1
        s_lshl_b32 s16, s16, 8
        s_add_u32 s16, s16, s17
        s_add_u32 s16, s16, s{s_base}''')
        for ks in range(7):
            r=wreg(t*7+ks)
            a(f'''s_add_u32 s20, s16, {ks*4096}
            buffer_load_dwordx4 {rr(r,4)}, v1, s[8:11], s20 offen
            buffer_load_dwordx4 {rr(r+4,4)}, v1, s[8:11], s20 offen offset:2048''')
        if t>=3: a(f's_waitcnt vmcnt(42)')

def mix(a, mf, va, start=0, per=1):
    va=list(va);
    for i,m in enumerate(mf):
        a(m)
        if i>=start:
            for _ in range(per):
                if va: a(va.pop(0))
    for v in va: a(v)

class Gen:
    def __init__(self, a, prof, stamps, opts):
        self.a=a; self.prof=prof; self.stamps=stamps; self.o=opts
    def stamp(self,i):
        if not self.stamps: return
        self.a(f'''s_memtime s[50:51]
        s_waitcnt lgkmcnt(0)
        s_sub_u32 s52, s50, s48
        s_add_u32 s{60+i}, s{60+i}, s52
        s_mov_b32 s48, s50''')
    def stamp_init(self):
        a=self.a
        self.calib(86)
        if self.prof: a('s_memtime s[40:41]\ns_memrealtime s[42:43]\ns_waitcnt lgkmcnt(0)')
        if not self.stamps: return
        for i in range(12): a(f's_mov_b32 s{60+i}, 0')
        a('s_memtime s[48:49]\ns_waitcnt lgkmcnt(0)')
    def trace(self,i):
        if not self.o.get('trace'): return
        self.n=getattr(self,'n',0)+1
        self.a(f'''s_cmp_lg_u32 s15, {self.o.get('trace')}
        s_cbranch_scc1 L_tr{self.n}
        s_memtime s[{72+2*i}:{73+2*i}]
L_tr{self.n}:''')
    def calib(self, dst):
        if not self.o.get('trace'): return
        a=self.a; self.n=getattr(self,'n',0)+1
        a(f'''s_memrealtime s[90:91]
        s_waitcnt lgkmcnt(0)
L_cal{self.n}:
        s_memrealtime s[92:93]
        s_memtime s[94:95]
        s_waitcnt lgkmcnt(0)
        s_cmp_eq_u32 s92, s90
        s_cbranch_scc1 L_cal{self.n}
        s_mov_b32 s{dst}, s92
        s_mov_b32 s{dst+1}, s94''')
    def count(self,i):
        if self.stamps: self.a(f's_add_u32 s{60+i}, s{60+i}, s21')

def poll_loop(a, tag, loads, regs, tmp, fail, pipe_regs=None):
    a(f's_mov_b32 s21, 0\nL_{tag}:')
    loads()
    a(f'''s_add_u32 s21, s21, 1
    s_cmp_gt_u32 s21, {TIMEOUT}
    s_cbranch_scc1 {fail}
    s_waitcnt vmcnt(0)''')
    maxtree(a, regs, tmp)
    a(f'''v_cmp_eq_u32 vcc, -1, v{tmp}
    s_cbranch_vccnz L_{tag}''')

def probe(a, tag, vH, vHo, off, sTarget, fail):
    ld=lambda r: f'buffer_load_dword v{r}, v{vHo}, s[8:11], s39 offen offset:{off} sc1'
    a(f'''s_mov_b32 s21, 0
    {ld(vH)}
L_pr_{tag}:
    {ld(vH+1)}
    s_add_u32 s21, s21, 1
    s_cmp_gt_u32 s21, {TIMEOUT}
    s_cbranch_scc1 {fail}
    s_waitcnt vmcnt(1)
    v_cmp_gt_u32 vcc, s{sTarget}, v{vH}
    s_cbranch_vccz L_pr_{tag}_ok
    {ld(vH)}
    s_waitcnt vmcnt(1)
    v_cmp_gt_u32 vcc, s{sTarget}, v{vH+1}
    s_cbranch_vccnz L_pr_{tag}
L_pr_{tag}_ok:''')
def hint_store(a, vTmp, sSlot):
    a(f'''s_mov_b64 exec, 1
    buffer_store_dword v{vTmp}, off, s[8:11], s{sSlot}
    s_mov_b64 exec, -1''')
def maxtree(a, regs, tmp):
    regs=list(regs); n=len(regs)
    outs=[]; i=0; t=tmp
    while i<n:
        g=regs[i:i+3]
        if len(g)==3: a(f'v_max3_u32 v{t}, v{g[0]}, v{g[1]}, v{g[2]}'); outs.append(t); t+=1
        elif len(g)==2: a(f'v_max_u32 v{t}, v{g[0]}, v{g[1]}'); outs.append(t); t+=1
        else: outs.append(g[0])
        i+=3
    while len(outs)>1:
        nxt=[]; i=0; t=tmp
        while i<len(outs):
            g=outs[i:i+3]
            if len(g)==3: a(f'v_max3_u32 v{t}, v{g[0]}, v{g[1]}, v{g[2]}'); nxt.append(t); t+=1
            elif len(g)==2: a(f'v_max_u32 v{t}, v{g[0]}, v{g[1]}'); nxt.append(t); t+=1
            else:
                nxt.append(g[0])
            i+=3
        outs=nxt
    if outs[0]!=tmp: a(f'v_mov_b32 v{tmp}, v{outs[0]}')

def gen_score(G):
    a=G.a; o=G.o
    vD=0; vA=28; vXK=56; vMK=84; vSel=98; vIdx=102
    vMo0=103; vMo1=104; vL16=105; vMKa=106; vMKc=107; vSw=108; vSw2=109; vSr=110; vBias=111; vPo=112; vXa=113; vXc=114; vPf=115; vPst=116; vH=117; vHo=119
    sMem=24; sP=25; sXK=26; sStep=15
    a(f'''
    s_mul_i32 s23, s14, {14*56*512}
    s_add_u32 s23, s23, {WS['AT']}''')
    load_weights(a, 22, 23)
    a(f'''
    v_bfe_u32 v6, v0, 3, 1
    v_mov_b32 v{vIdx}, 0x44444444
    v_mov_b32 v7, 0xeeeeeeee
    v_cmp_eq_u32 vcc, 1, v6
    v_cndmask_b32 v{vIdx}, v{vIdx}, v7, vcc
    v_bfe_u32 v6, v2, 2, 1               ; (n&7)>>2
    v_cmp_eq_u32 vcc, v6, v5
    v_and_b32 v7, 1, v2
    v_lshlrev_b32 v7, 4, v7
    v_mov_b32 v8, 0x3f80
    v_lshlrev_b32 v7, v7, v8             ; 0x3f80 << (16*(n&1))
    v_cndmask_b32 v7, 0, v7, vcc
    v_lshrrev_b32 v8, 3, v2              ; n>>3
    v_lshlrev_b32 v8, 1, v8
    v_bfe_u32 v9, v2, 1, 1
    v_add_u32 v8, v8, v9''')
    for k in range(4):
        a(f'''v_cmp_eq_u32 vcc, {k}, v8
        v_cndmask_b32 v{vSel+k}, 0, v7, vcc''')
    a(f'''
    s_mul_i32 s16, s13, 1792
    v_lshlrev_b32 v{vL16}, 4, v0
    v_add_u32 v{vMo0}, s16, v{vL16}
    v_min_u32 v6, 47, v0
    v_lshlrev_b32 v6, 4, v6
    v_add_u32 v6, 1024, v6
    v_add_u32 v{vMo1}, s16, v6
    s_mul_i32 s16, s13, {14*128}
    v_and_b32 v6, 7, v2
    v_lshlrev_b32 v6, 4, v6
    v_lshl_add_u32 v7, v3, 7, v6
    v_add_u32 v{vMKa}, s16, v7
    v_lshrrev_b32 v7, 1, v3
    v_lshl_add_u32 v7, v7, 7, v6
    v_and_b32 v8, 1, v3
    v_lshl_add_u32 v7, v8, 3, v7
    v_add_u32 v7, {12*128}, v7
    v_add_u32 v{vMKc}, s16, v7
    s_mul_i32 s16, s13, 1536
    s_add_u32 s16, s16, 8192
    v_mul_u32_u24 v6, 768, v5
    v_lshl_add_u32 v6, v2, 2, v6
    v_add_u32 v6, s16, v6
    v_lshl_add_u32 v{vSw}, v4, 6, v6
    v_mul_u32_u24 v7, 192, v4
    v_add_u32 v7, 128, v7
    v_add_u32 v{vSw2}, v6, v7
    v_and_b32 v6, 31, v0                 ; kp
    s_lshl_b32 s16, s13, 1
    v_add_u32 v7, s16, v4                ; r
    v_lshlrev_b32 v8, 1, v6              ; 2kp
    v_add_u32 v9, 8, v8                  ; 16+2(kp-4)
    v_cmp_gt_u32 vcc, 4, v6
    v_cndmask_b32 v8, v9, v8, vcc
    v_cmp_gt_u32 vcc, 20, v6
    v_cndmask_b32 v8, 0, v8, vcc         ; key'
    v_mov_b32 v9, 0xff800000
    v_cndmask_b32 v{vBias}, v9, 0, vcc
    v_mul_u32_u24 v9, 192, v7
    v_lshl_add_u32 v9, v8, 2, v9
    v_add_u32 v{vSr}, 8192, v9
    s_lshr_b32 s16, s14, 2
    s_mul_i32 s16, s16, 2560             ; wv*2560
    s_and_b32 s17, s14, 3                ; h%4
    v_and_b32 v8, 1, v6
    v_lshl_add_u32 v8, v8, 3, v7
    s_lshl_b32 s20, s17, 4
    v_add_u32 v8, s20, v8
    v_lshlrev_b32 v8, 3, v8
    v_lshrrev_b32 v9, 1, v6
    v_lshl_add_u32 v8, v9, 2, v8
    v_add_u32 v8, 2048, v8
    v_subrev_u32 v9, 4, v6
    v_and_b32 v9, 15, v9
    v_lshrrev_b32 v10, 3, v9
    s_and_b32 s20, s14, 1
    s_lshl_b32 s20, s20, 1
    v_add_u32 v10, s20, v10
    v_lshlrev_b32 v10, 4, v10
    v_and_b32 v11, 1, v9
    v_lshl_add_u32 v10, v11, 3, v10
    v_add_u32 v10, v10, v7
    v_lshlrev_b32 v10, 4, v10
    v_bfe_u32 v11, v9, 1, 2
    v_lshl_add_u32 v10, v11, 2, v10
    s_lshr_b32 s20, s17, 1
    s_lshl_b32 s20, s20, 10
    v_add_u32 v10, s20, v10
    v_cmp_gt_u32 vcc, 4, v6
    v_cndmask_b32 v8, v10, v8, vcc
    v_add_u32 v{vPo}, s16, v8
    v_lshlrev_b32 v{vXc}, 3, v0
    s_mul_i32 s16, s14, 14
    v_add_u32 v6, s16, v0
    v_lshlrev_b32 v6, 7, v6
    v_add_u32 v6, {WS['XP']+28672}, v6
    v_mov_b32 v{vPst}, 28672
    s_mul_i32 s16, s14, 5
    s_sub_u32 s16, s16, 14
    v_add_u32 v7, s16, v0
    v_lshlrev_b32 v7, 7, v7
    v_add_u32 v7, {WS['P']+10240}, v7
    v_mov_b32 v8, 10240
    v_cmp_lt_u32 vcc, 13, v0
    v_cndmask_b32 v6, v6, v7, vcc
    v_cndmask_b32 v{vPst}, v{vPst}, v8, vcc
    s_lshl_b32 s16, s14, 2
    s_sub_u32 s16, s16, 19
    v_add_u32 v7, s16, v0
    v_min_u32 v7, 55, v7
    v_lshlrev_b32 v7, 7, v7
    v_add_u32 v7, {WS['MEM']+2*7168}, v7
    v_mov_b32 v8, 7168
    v_cmp_lt_u32 vcc, 18, v0
    v_cndmask_b32 v6, v6, v7, vcc
    v_cndmask_b32 v{vPst}, v{vPst}, v8, vcc
    v_mov_b32 v{vXa}, v6
    s_mov_b32 s{sMem}, {WS['MEM']}
    s_mov_b32 s{sP}, {WS['P']}
    s_mul_i32 s16, s13, 7168
    s_add_u32 s{sXK}, s16, {WS['XP']}
    s_mov_b32 s{sStep}, 0
    s_mov_b32 s39, {WS['HINT']}
    v_lshlrev_b32 v{vHo}, 2, v2
    s_lshl_b32 s16, s14, 2
    s_add_u32 s53, s16, {WS['HINT']+64}
    s_mov_b32 s56, s4
    s_or_b32 s57, s5, 0x00080000
    s_mov_b32 s58, 0x02000000
    s_mov_b32 s59, 0x00020000
    s_mul_i32 s16, s14, 224
    s_mul_i32 s17, s13, 56
    s_add_u32 s16, s16, s17
    s_lshl_b32 s16, s16, 7
    s_add_u32 s55, s16, {WS['U']+16*16*1792}
    s_mov_b32 s33, 128
    s_mov_b32 s30, 0x000fffff
    s_mov_b32 s31, 0x000fffff
    s_waitcnt vmcnt(0)
    ''')
    def xk_loads():
        for kt in range(2):
            b=vXK+14*kt
            a(f'''s_add_u32 s20, s{sXK}, {kt*3584}
            buffer_load_dwordx4 {vr(b,4)}, v{vL16}, s[8:11], s20 offen
            buffer_load_dwordx4 {vr(b+4,4)}, v{vL16}, s[8:11], s20 offen offset:1024
            buffer_load_dwordx4 {vr(b+8,4)}, v{vL16}, s[8:11], s20 offen offset:2048
            buffer_load_dwordx2 {vr(b+12,2)}, v{vXc}, s[8:11], s20 offen offset:3072''')
    a(f'''v_sub_u32 v6, v{vXa}, v{vPst}
    s_mov_b64 exec, 0x7fffff
    buffer_load_dword v{vPf}, v6, s[8:11], 0 offen
    s_mov_b64 exec, -1''')
    xk_loads()
    G.stamp_init()
    a('L_sc_loop:')
    for i in range(28): a(f'v_mov_b32 v{vD+i}, 0')
    def ld():
        a(f'''buffer_load_dwordx4 {vr(vA,4)}, v{vMo0}, s[8:11], s{sMem} offen sc1
        buffer_load_dwordx4 {vr(vA+4,4)}, v{vMo1}, s[8:11], s{sMem} offen sc1''')
    npipe=o.get('pipe',0)
    if o.get('hint'):
        probe(a,'sc',vH,vHo,0,sStep,'L_ch_fail')
    if o.get('sa'): a(f's_sleep {o.get("sa")}')
    if npipe:
        sets=[vA+12, vA+20]
        def issue(b):
            a(f'''buffer_load_dwordx4 {vr(b,4)}, v{vMo0}, s[8:11], s{sMem} offen sc1
            buffer_load_dwordx4 {vr(b+4,4)}, v{vMo1}, s[8:11], s{sMem} offen sc1''')
        def take(b):
            a(f'''s_waitcnt vmcnt(2)
            ds_write_b128 v{vMo0}, {vr(b,4)}
            ds_write_b128 v{vMo1}, {vr(b+4,4)}''')
            maxtree(a, range(b,b+8), vA)
            a(f'v_cmp_eq_u32 vcc, -1, v{vA}')
        a('s_mov_b32 s21, 0')
        issue(sets[0])
        a('L_pm_sc:')
        issue(sets[1])
        take(sets[0])
        a('s_cbranch_vccz L_pm_sc_ok')
        a(f'''s_add_u32 s21, s21, 1
        s_cmp_gt_u32 s21, {TIMEOUT}
        s_cbranch_scc1 L_ch_fail''')
        issue(sets[0])
        take(sets[1])
        a('s_cbranch_vccnz L_pm_sc')
        a('L_pm_sc_ok:')
        G.trace(0); G.stamp(0); G.count(10)
        a('s_waitcnt lgkmcnt(0)\ns_barrier')
        G.stamp(1); G.trace(1)
        for ks in range(3): a(f'ds_read_b128 {vr(vA+4*ks,4)}, v{vL16} offset:{ks*1024}')
    else:
        poll_loop(a,'pm_sc',ld,range(vA,vA+8),vA+8,'L_ch_fail')
        G.trace(0)
        G.stamp(0); G.count(10)
        a(f'''ds_write_b128 v{vMo0}, {vr(vA,4)}
        ds_write_b128 v{vMo1}, {vr(vA+4,4)}
        s_waitcnt lgkmcnt(0)
        s_barrier''')
        G.stamp(1); G.trace(1)
        for ks in range(3): a(f'ds_read_b128 {vr(vA+4*ks,4)}, v{vL16} offset:{ks*1024}')
    def smf(t,ks): return f'v_smfmac_f32_16x16x64_bf16 {vr(vD+4*t,4)}, {vr(vA+4*ks,4)}, {W(t,ks)}, v{vIdx}'
    def cvt(dst, src): return [f'v_cvt_pk_bf16_f32 v{dst}, v{src}, v{src+1}', f'v_cvt_pk_bf16_f32 v{dst+1}, v{src+2}, v{src+3}']
    a('s_waitcnt lgkmcnt(2)')
    for t in range(7): a(smf(t,0))
    a('s_waitcnt vmcnt(0)')
    for ks in range(3,7): a(f'ds_read_b128 {vr(vA+4*ks,4)}, v{vL16} offset:{ks*1024}')
    a(f'''ds_read_b128 {vr(vMK,4)}, v{vMKa}
    ds_read_b128 {vr(vMK+4,4)}, v{vMKa} offset:512
    ds_read_b128 {vr(vMK+8,4)}, v{vMKa} offset:1024
    ds_read_b64 {vr(vMK+12,2)}, v{vMKc}''')
    a(f'''s_cmp_lg_u32 s13, 0
    s_cbranch_scc1 L_sc_nopf
    s_mov_b64 exec, 0x7fffff
    buffer_load_dword v{vPf}, v{vXa}, s[8:11], 0 offen
    s_mov_b64 exec, -1
    v_add_u32 v{vXa}, v{vXa}, v{vPst}
L_sc_nopf:''')
    if o.get('upf'):
        a(f'''s_mov_b32 exec_hi, 0x00ffffff
        buffer_load_dword v{vPf}, v{vL16}, s[56:59], s55 idxen
        s_mov_b32 exec_hi, -1
        s_add_u32 s55, s55, {16*16*1792}''')
    a('s_waitcnt lgkmcnt(9)')
    for t in range(7): a(smf(t,1))
    a('s_waitcnt lgkmcnt(8)')
    for t in range(7): a(smf(t,2))
    a('s_waitcnt lgkmcnt(4)')
    PB0=vA; PB1=vA+4
    A2C=vD+20; A2B=vD+22; A2A=vD+4; vS=vA+8
    keys=[vMK, vXK, vXK+14]
    trC=f'v_mfma_f32_16x16x16_bf16 {vr(vD+24,4)}, {vr(PB0,2)}, {vr(vSel,2)}, 0'
    trB=f'v_mfma_f32_16x16x32_bf16 {vr(vD+16,4)}, {vr(PB1,4)}, {vr(vSel,4)}, 0'
    trA0=f'v_mfma_f32_16x16x32_bf16 {vr(vD+0,4)}, {vr(PB0,4)}, {vr(vSel,4)}, 0'
    trA1=f'v_mfma_f32_16x16x32_bf16 {vr(vD+8,4)}, {vr(PB1,4)}, {vr(vSel,4)}, 0'
    for ks in range(3,7): a(smf(6,ks))
    m45=[smf(t,ks) for ks in range(3,7) for t in (4,5)]
    mix(a, m45, cvt(PB0,vD+24), start=6, per=1)
    m01=[smf(t,ks) for ks in range(3,7) for t in (0,1)]
    a(m01[0]); a(m01[1]); a(trC)
    mix(a, m01[2:], cvt(PB1,vD+16)+cvt(PB1+2,vD+20), start=2, per=1)
    m23=[smf(t,ks) for ks in range(3,7) for t in (2,3)]
    a(m23[0]); a(m23[1]); a(trB)
    mix(a, m23[2:], cvt(A2C,vD+24)+cvt(PB0,vD+0)+cvt(PB0+2,vD+4), start=0, per=1)
    a('s_waitcnt lgkmcnt(0)')
    a(trA0)
    s2C=[f'v_mfma_f32_16x16x16_bf16 {vr(vS+4*kt,4)}, {vr(A2C,2)}, {vr(keys[kt]+12,2)}, 0' for kt in range(3)]
    s2B=[f'v_smfmac_f32_16x16x32_bf16 {vr(vS+4*kt,4)}, {vr(A2B,2)}, {vr(keys[kt]+8,4)}, v{vIdx}' for kt in range(3)]
    s2A=[f'v_smfmac_f32_16x16x64_bf16 {vr(vS+4*kt,4)}, {vr(A2A,4)}, {vr(keys[kt],8)}, v{vIdx}' for kt in range(3)]
    mix(a, s2C, cvt(A2B,vD+16)+cvt(PB1,vD+8)+cvt(PB1+2,vD+12), start=0, per=2)
    a(trA1)
    mix(a, s2B, cvt(A2A,vD+0), start=1, per=2)
    for c in cvt(A2A+2,vD+8): a(c)
    for m in s2A: a(m)
    if G.stamps: a('s_nop 7\ns_nop 7')
    G.stamp(2)
    Z=vD
    pairs=[(vS+q, vS+4+q) for q in range(4)]+[(vS+8,vS+9),(vS+10,vS+11)]
    for x,y in pairs: a(f'v_permlane32_swap_b32 v{x}, v{y}')
    wr=[(vSw,q*192) for q in range(4)]+[(vSw2,0),(vSw2,384)]
    for i,((x,y),(ad,of)) in enumerate(zip(pairs,wr)):
        a(f'v_add_f32 v{Z+i}, v{x}, v{y}')
    for i,((x,y),(ad,of)) in enumerate(zip(pairs,wr)):
        a(f'ds_write_b32 v{ad}, v{Z+i} offset:{of}')
    a('s_waitcnt lgkmcnt(0)')
    G.stamp(3); G.trace(2)
    if o.get('hint'): a(f's_add_u32 s54, s{sStep}, 1\nv_mov_b32 v{vA+20}, s54')
    a('s_barrier')
    G.stamp(4)
    R=vA
    for w in range(4): a(f'ds_read_b64 {vr(R+2*w,2)}, v{vSr} offset:{w*1536}')
    if o.get('hint'):
        a('s_cmp_lg_u32 s13, 0\ns_cbranch_scc1 L_sc_nohint')
        hint_store(a, vA+20, 53)
        a('L_sc_nohint:')
    M=vA+8; E0=vA+10; E1=vA+11; Tm=vA+9
    a(f'''s_waitcnt lgkmcnt(2)
    v_add_f32 v{R}, v{R}, v{R+2}
    v_add_f32 v{R+1}, v{R+1}, v{R+3}
    v_add_f32 v{R}, v{R}, v{vBias}
    v_add_f32 v{R+1}, v{R+1}, v{vBias}
    s_waitcnt lgkmcnt(0)
    v_add_f32 v{R+4}, v{R+4}, v{R+6}
    v_add_f32 v{R+5}, v{R+5}, v{R+7}
    v_add_f32 v{R}, v{R}, v{R+4}
    v_add_f32 v{R+1}, v{R+1}, v{R+5}
    v_max_f32 v{M}, v{R}, v{R+1}''')
    for ro in (8,4,2,1): a(f'v_max_f32_dpp v{M}, v{M}, v{M} row_ror:{ro} row_mask:0xf bank_mask:0xf')
    a(f'''v_mov_b32 v{Tm}, v{M}
    v_permlane16_swap_b32 v{M}, v{Tm}
    v_max_f32 v{M}, v{M}, v{Tm}
    v_sub_f32 v{E0}, v{R}, v{M}
    v_sub_f32 v{E1}, v{R+1}, v{M}
    v_exp_f32 v{E0}, v{E0}
    v_exp_f32 v{E1}, v{E1}
    v_add_f32 v{M}, v{E0}, v{E1}''')
    for ro in (8,4,2,1): a(f'v_add_f32_dpp v{M}, v{M}, v{M} row_ror:{ro} row_mask:0xf bank_mask:0xf')
    a(f'''v_mov_b32 v{Tm}, v{M}
    v_permlane16_swap_b32 v{M}, v{Tm}
    v_add_f32 v{M}, v{M}, v{Tm}
    v_rcp_f32 v{M}, v{M}
    v_mul_f32 v{E0}, v{E0}, v{M}
    v_mul_f32 v{E1}, v{E1}, v{M}
    v_cvt_pk_bf16_f32 v{E0}, v{E0}, v{E1}
    s_mov_b64 exec, s[30:31]
    buffer_store_dword v{E0}, v{vPo}, s[8:11], s{sP} offen
    s_mov_b64 exec, -1''')
    G.stamp(5); G.trace(3)
    a(f'''s_add_u32 s{sMem}, s{sMem}, 7168
    s_add_u32 s{sP}, s{sP}, 10240
    s_add_u32 s{sXK}, s{sXK}, 28672
    s_add_u32 s{sStep}, s{sStep}, 1
    s_cmp_ge_u32 s{sStep}, {NSTEP}
    s_cbranch_scc1 L_ch_done''')
    xk_loads()
    a('s_branch L_sc_loop')

def memq_off(a, vPos, vOut, t0):
    w,rem,g,t,b,x=t0,t0+1,t0+2,t0+3,t0+4,t0+5
    a(f'''s_mov_b32 s16, {(2**32+111)//112}
    v_mul_hi_u32 v{w}, v{vPos}, s16
    v_mul_u32_u24 v{x}, 112, v{w}
    v_sub_u32 v{rem}, v{vPos}, v{x}
    v_lshrrev_b32 v{g}, 4, v{rem}
    v_bfe_u32 v{t}, v{rem}, 3, 1
    v_lshlrev_b32 v{t}, 1, v{t}
    v_bfe_u32 v{x}, v{rem}, 1, 1
    v_add_u32 v{t}, v{t}, v{x}
    v_bfe_u32 v{b}, v{rem}, 2, 1
    v_lshlrev_b32 v{b}, 1, v{b}
    ; group B
    v_subrev_u32 v{x}, 64, v{rem}
    v_lshrrev_b32 v{x}, 3, v{x}
    v_cmp_le_u32 vcc, 64, v{rem}
    v_cndmask_b32 v{g}, v{g}, v{x}, vcc
    v_bfe_u32 v{x}, v{rem}, 1, 1
    v_add_u32 v{x}, 4, v{x}
    v_cndmask_b32 v{t}, v{t}, v{x}, vcc
    ; group C
    v_subrev_u32 v{x}, 96, v{rem}
    v_lshrrev_b32 v{x}, 2, v{x}
    v_cmp_le_u32 vcc, 96, v{rem}
    v_cndmask_b32 v{g}, v{g}, v{x}, vcc
    v_mov_b32 v{x}, 6
    v_cndmask_b32 v{t}, v{t}, v{x}, vcc
    v_and_b32 v{x}, 3, v{rem}
    v_cndmask_b32 v{b}, v{b}, v{x}, vcc
    ; R' = 16*(7w+t) + 8(g&1) + 4(g>>1) + b
    v_mul_u32_u24 v{w}, 7, v{w}
    v_add_u32 v{w}, v{w}, v{t}
    v_lshlrev_b32 v{w}, 4, v{w}
    v_and_b32 v{x}, 1, v{g}
    v_lshl_add_u32 v{w}, v{x}, 3, v{w}
    v_lshrrev_b32 v{x}, 1, v{g}
    v_lshl_add_u32 v{w}, v{x}, 2, v{w}
    v_add_u32 v{w}, v{w}, v{b}
    v_lshrrev_b32 v{x}, 3, v{w}
    v_lshlrev_b32 v{x}, 7, v{x}
    v_and_b32 v{w}, 7, v{w}
    v_lshl_add_u32 v{vOut}, v{w}, 1, v{x}''')

def gen_value(G):
    a=G.a; o=G.o
    vD=0; vA=28; vU=56; vYB=88; vO=96; vIdx=104
    vMo0=105; vMo1=106; vL16=107; vYw=108; vYr=109; vYg=110; vUo=111; vPa=112; vPb=113; vOw=114; vOr=115; vMs=116; vH=117; vHo=119; vQ0=117; vQ1=118
    assert not (o.get('hint') and o.get('memq',1))
    sMem=24; sP=25; sU=26; sY=27; sStep=15
    a(f'''
    s_sub_u32 s14, s14, 16                ; v
    s_mul_i32 s23, s14, 28
    s_add_u32 s27, s23, s22               ; tau0 = 28v + 7w
    s_mov_b32 s28, {WS['BT']}''')
    load_weights(a, 27, 28)
    a(f'''
    v_bfe_u32 v6, v0, 3, 1
    v_mov_b32 v{vIdx}, 0x44444444
    v_mov_b32 v7, 0xeeeeeeee
    v_cmp_eq_u32 vcc, 1, v6
    v_cndmask_b32 v{vIdx}, v{vIdx}, v7, vcc
    v_lshlrev_b32 v{vL16}, 4, v0
    s_mul_i32 s16, s13, 1792
    v_add_u32 v{vMo0}, s16, v{vL16}
    v_min_u32 v6, 47, v0
    v_lshlrev_b32 v6, 4, v6
    v_add_u32 v6, 1024, v6
    v_add_u32 v{vMo1}, s16, v6
    v_lshl_add_u32 v6, v4, 4, v2
    v_lshlrev_b32 v6, 4, v6
    v_lshl_add_u32 v6, v5, 3, v6
    s_lshl_b32 s16, s13, 11
    s_add_u32 s16, s16, 8192
    v_add_u32 v{vYw}, s16, v6
    s_mul_i32 s17, s13, 1792
    v_add_u32 v{vYg}, s17, v6
    v_mul_u32_u24 v6, 28, v3
    v_add_u32 v6, v6, v2
    v_lshlrev_b32 v6, 4, v6
    v_add_u32 v{vYr}, s16, v6
    v_lshlrev_b32 v6, 6, v2
    v_lshl_add_u32 v{vUo}, v3, 4, v6
    s_mul_i32 s16, s13, 2560
    v_add_u32 v{vPa}, s16, v{vL16}
    v_lshlrev_b32 v6, 3, v0
    v_add_u32 v6, 2048, v6
    v_add_u32 v{vPb}, s16, v6
    v_lshl_add_u32 v6, v4, 4, v2
    v_lshlrev_b32 v6, 2, v6
    v_lshl_add_u32 v6, v5, 9, v6
    s_lshl_b32 s16, s13, 10
    s_add_u32 s16, s16, 16384
    v_add_u32 v{vOw}, s16, v6
    v_add_u32 v{vOr}, 16384, v{vL16}
    v_and_b32 v6, 7, v0
    v_min_u32 v6, 6, v6
    v_lshlrev_b32 v6, 2, v6
    v_add_u32 v6, s23, v6
    v_lshrrev_b32 v7, 3, v6
    v_lshlrev_b32 v7, 7, v7
    v_and_b32 v6, 7, v6
    v_lshl_add_u32 v7, v6, 1, v7
    v_lshrrev_b32 v8, 3, v0
    v_lshl_add_u32 v{vMs}, v8, 4, v7''')
    if o.get('memq',1):
        a(f'''v_and_b32 v6, 7, v0
        v_min_u32 v6, 6, v6
        v_lshlrev_b32 v6, 2, v6
        v_add_u32 v6, s23, v6              ; pos''')
        memq_off(a, 6, vQ0, 10)
        a('v_add_u32 v6, 2, v6')
        memq_off(a, 6, vQ1, 10)
        a(f'''v_lshrrev_b32 v8, 3, v0
        v_lshl_add_u32 v{vQ0}, v8, 4, v{vQ0}
        v_lshl_add_u32 v{vQ1}, v8, 4, v{vQ1}''')
    a(f'''
    s_mov_b32 s33, 136
    s_mov_b32 s30, 0x7f7f7f7f
    s_mov_b32 s31, 0x7f7f7f7f
    s_mov_b32 s{sMem}, {WS['MEM']}
    s_mov_b32 s{sP}, {WS['P']}
    s_mul_i32 s16, s14, {16*1792}
    s_add_u32 s37, s16, {WS['U']}
    s_mul_i32 s17, s13, {4*1792}
    s_add_u32 s{sU}, s37, s17
    s_mul_i32 s16, s14, {16*28*16}
    s_add_u32 s{sY}, s16, {WS['Y']}
    s_mov_b32 s{sStep}, 0
    s_mov_b32 s39, {WS['HINT']}
    v_lshlrev_b32 v{vHo}, 2, v2
    s_lshl_b32 s16, s14, 2
    s_add_u32 s53, s16, {WS['HINT']}
    s_waitcnt vmcnt(0)
    ''')
    def uloads(lst, soff=0):
        if o.get('nou'): return
        for (ks,hh,nt) in lst:
            b=vU+(ks*2+nt)*8+hh*4
            a(f'''s_add_u32 s20, s{sU}, {(2*ks+hh)*1792+nt*1024+soff}
            buffer_load_dwordx4 {vr(b,4)}, v{vUo}, s[8:11], s20 offen''')
    ALLU=[(ks,hh,nt) for ks in range(2) for hh in range(2) for nt in range(2)]
    n1=o.get('n1',4)
    uloads(ALLU[:n1])
    G.stamp_init()
    a('L_va_loop:')
    for i in range(28): a(f'v_mov_b32 v{vD+i}, 0')
    for i in range(8): a(f'v_mov_b32 v{vO+i}, 0')
    def ldm():
        a(f'''buffer_load_dwordx4 {vr(vA,4)}, v{vMo0}, s[8:11], s{sMem} offen sc1
        buffer_load_dwordx4 {vr(vA+4,4)}, v{vMo1}, s[8:11], s{sMem} offen sc1''')
    if o.get('hint'): probe(a,'vm',vH,vHo,0,sStep,'L_ch_fail')
    if o.get('sv'): a(f's_sleep {o.get("sv")}')
    poll_loop(a,'pm_va',ldm,range(vA,vA+8),vA+8,'L_ch_fail')
    G.count(10); G.trace(0)
    G.stamp(0)
    a(f'''ds_write_b128 v{vMo0}, {vr(vA,4)}
    ds_write_b128 v{vMo1}, {vr(vA+4,4)}
    s_waitcnt lgkmcnt(0)
    s_barrier''')
    G.stamp(1)
    for ks in range(7): a(f'ds_read_b128 {vr(vA+4*ks,4)}, v{vL16} offset:{ks*1024}')
    def smf(t,ks): return f'v_smfmac_f32_16x16x64_bf16 {vr(vD+4*t,4)}, {vr(vA+4*ks,4)}, {W(t,ks)}, v{vIdx}'
    def uload1(ks,hh,nt):
        b=vU+(ks*2+nt)*8+hh*4
        return [f's_add_u32 s20, s{sU}, {(2*ks+hh)*1792+nt*1024}', f'buffer_load_dwordx4 {vr(b,4)}, v{vUo}, s[8:11], s20 offen']
    rest=[] if o.get('nou') else [x for u in ALLU[n1:] for x in uload1(*u)]
    rest=list(rest)
    def spread(mf, every=3, first=1):
        for i,m in enumerate(mf):
            a(m)
            if i>=first and (i-first)%every==0 and rest: a(rest.pop(0)); a(rest.pop(0))
    a('s_waitcnt lgkmcnt(6)')
    spread([smf(t,0) for t in range(7)])
    a('s_waitcnt lgkmcnt(5)')
    spread([smf(t,1) for t in range(7)])
    a('s_waitcnt lgkmcnt(0)')
    Z=vA
    YPk=[vD+26, vD+0, vD+2, vD+24]
    def fold(k):
        ta=2*k; tb=2*k+1; L=[]
        if k==3:
            L+=[f'v_mov_b32 v{Z+4+q}, v{vD+24+q}' for q in range(4)]; B=Z+4
        else: B=vD+4*tb
        L+=[f'v_permlane32_swap_b32 v{vD+4*ta+q}, v{B+q}' for q in range(4)]
        L+=[f'v_add_f32 v{Z+q}, v{vD+4*ta+q}, v{B+q}' for q in range(4)]
        L+=[f'v_cvt_pk_bf16_f32 v{YPk[k]}, v{Z}, v{Z+1}', f'v_cvt_pk_bf16_f32 v{YPk[k]+1}, v{Z+2}, v{Z+3}', f'ds_write_b64 v{vYw}, {vr(YPk[k],2)} offset:{k*512}']
        return L
    m6=[smf(6,ks) for ks in range(2,7)]
    m01=[smf(t,ks) for ks in range(2,7) for t in (0,1)]
    m23=[smf(t,ks) for ks in range(2,7) for t in (2,3)]
    m45=[smf(t,ks) for ks in range(2,7) for t in (4,5)]
    spread(m6+m01)
    for x in rest: a(x)
    mix(a, m23, fold(3)+fold(0), start=2, per=3)
    mix(a, m45, fold(1), start=7, per=2)
    for x in fold(2): a(x)
    if G.stamps: a('s_nop 7\ns_nop 7')
    G.stamp(2)
    def ystores():
        if o.get('noy') : return
        for k in range(4):
            if k==3: a('s_mov_b32 exec_hi, 0')
            a(f'buffer_store_dwordx2 {vr(YPk[k],2)}, v{vYg}, s[8:11], s{sY} offen offset:{k*512} {["","nt","sc1","sc0 sc1","sc0"][o.get("yst",0)]}')
            if k==3: a('s_mov_b32 exec_hi, -1')
    a(f'''s_cmp_lt_u32 s{sStep}, {NSTEP}
    s_cbranch_scc1 L_va_cont''')
    ystores()
    a(f'''s_branch L_ch_done
L_va_cont:
    s_waitcnt lgkmcnt(0)
    ds_read_b128 {vr(vYB,4)}, v{vYr}
    ds_read_b128 {vr(vYB+4,4)}, v{vYr} offset:256''')
    G.stamp(3); G.trace(1)
    P0=vA; P1=vA+4; P2=vA+8; PT=vA+20; Z=vA+24
    def ldp(b0,b1,b2):
        a(f'''buffer_load_dwordx4 {vr(b0,4)}, v{vPa}, s[8:11], s{sP} offen sc1
        buffer_load_dwordx4 {vr(b1,4)}, v{vPa}, s[8:11], s{sP} offen offset:1024 sc1
        buffer_load_dwordx2 {vr(b2,2)}, v{vPb}, s[8:11], s{sP} offen sc1''')
    def pw(b0,b1,b2):
        for nt in range(2):
            a(f'v_smfmac_f32_16x16x32_bf16 {vr(vO+4*nt,4)}, {vr(b2,2)}, {vr(vYB+4*nt,4)}, v{vIdx}')
        for ks in range(2):
            for nt in range(2):
                a(f'v_smfmac_f32_16x16x64_bf16 {vr(vO+4*nt,4)}, {vr(b0 if ks==0 else b1,4)}, {vr(vU+(ks*2+nt)*8,8)}, v{vIdx}')
    if o.get('hint'):
        a(f's_add_u32 s54, s{sStep}, 1')
        probe(a,'vp',vH,vHo,64,54,'L_ch_fail')
    if o.get('sp'): a(f's_sleep {o.get("sp")}')
    if o.get('pipeb'):
        Q0=vA+10; Q1=vA+14; Q2=vA+18
        a('s_mov_b32 s21, 0')
        ldp(P0,P1,P2)
        a('L_pp_va:')
        ldp(Q0,Q1,Q2)
        a(f'''s_add_u32 s21, s21, 1
        s_cmp_gt_u32 s21, {TIMEOUT}
        s_cbranch_scc1 L_ch_fail
        s_waitcnt vmcnt(3)''')
        maxtree(a, range(P0,P0+10), PT)
        a(f'''v_cmp_eq_u32 vcc, -1, v{PT}
        s_cbranch_vccz L_pp_ok0''')
        ldp(P0,P1,P2)
        a('s_waitcnt vmcnt(3)')
        maxtree(a, list(range(Q0,Q0+10)), PT)
        a(f'''v_cmp_eq_u32 vcc, -1, v{PT}
        s_cbranch_vccnz L_pp_va
        s_waitcnt lgkmcnt(0)''')
        G.stamp(4); G.count(11)
        pw(Q0,Q1,Q2)
        a('s_branch L_pp_j\nL_pp_ok0:\ns_waitcnt lgkmcnt(0)')
        G.stamp(4); G.count(11)
        pw(P0,P1,P2)
        a('L_pp_j:')
    else:
        poll_loop(a,'pp_va',lambda: ldp(P0,P1,P2),range(P0,P0+10),PT,'L_ch_fail')
        G.trace(2)
        a('s_waitcnt lgkmcnt(0)')
        G.stamp(4); G.count(11)
        pw(P0,P1,P2)
    for q in range(4): a(f'v_permlane32_swap_b32 v{vO+q}, v{vO+4+q}')
    for q in range(4): a(f'v_add_f32 v{Z+q}, v{vO+q}, v{vO+4+q}')
    for q in range(4): a(f'ds_write_b32 v{vOw}, v{Z+q} offset:{q*128}')
    a('s_waitcnt lgkmcnt(0)')
    G.stamp(5); G.trace(3)
    a('s_barrier')
    G.stamp(6)
    a(f'''s_cmp_lg_u32 s13, 0
    s_cbranch_scc1 L_va_next''')
    F=vD+4
    for w in range(4): a(f'ds_read_b128 {vr(F+4*w,4)}, v{vOr} offset:{w*1024}')
    if o.get('hint'):
        a(f'v_mov_b32 v{vD+20}, s54')
        hint_store(a, vD+20, 53)
    a('s_waitcnt lgkmcnt(2)')
    for q in range(4): a(f'v_add_f32 v{F+q}, v{F+q}, v{F+4+q}')
    a('s_waitcnt lgkmcnt(0)')
    for q in range(4): a(f'v_add_f32 v{F+8+q}, v{F+8+q}, v{F+12+q}')
    for q in range(4): a(f'v_add_f32 v{F+q}, v{F+q}, v{F+8+q}')
    a(f'''v_cvt_pk_bf16_f32 v{F+4}, v{F}, v{F+1}
    v_cvt_pk_bf16_f32 v{F+5}, v{F+2}, v{F+3}
    s_add_u32 s20, s{sMem}, 7168
    s_mov_b64 exec, s[30:31]
    buffer_store_dwordx2 {vr(F+4,2)}, v{vMs}, s[8:11], s20 offen''')
    if o.get('memq',1):
        a(f'''s_add_u32 s20, s20, {WS['MEMQ']-WS['MEM']}
        buffer_store_dword v{F+4}, v{vQ0}, s[8:11], s20 offen
        buffer_store_dword v{F+5}, v{vQ1}, s[8:11], s20 offen''')
    a(f'''s_mov_b64 exec, -1''')
    G.stamp(7); G.trace(4)
    a('L_va_next:')
    a('s_barrier')
    if o.get('pipeb'): a('s_waitcnt vmcnt(0)')
    ystores()
    a(f'''s_add_u32 s{sMem}, s{sMem}, 7168
    s_add_u32 s{sP}, s{sP}, 10240
    s_add_u32 s{sU}, s{sU}, {16*16*1792}
    s_add_u32 s{sY}, s{sY}, {16*16*28*16}
    s_add_u32 s{sStep}, s{sStep}, 1''')
    uloads(ALLU[:n1])
    a('s_branch L_va_loop')

def gen_chain(a, name, prof=False, stamps=False, **opts):
    G=Gen(a,prof,stamps,opts)
    a(f'.p2align 8\n.globl {name}\n.type {name},@function\n{name}:')
    elect(a, 20480)
    a('''
    v_and_b32 v2, 15, v0
    v_lshrrev_b32 v3, 4, v0
    v_lshrrev_b32 v4, 5, v0
    v_and_b32 v5, 1, v3
    v_lshlrev_b32 v1, 9, v3
    v_lshl_add_u32 v1, v2, 4, v1         ; g*512 + n16*16
    s_mul_i32 s22, s13, 7                 ; 7w
    s_mov_b32 s38, s14
    s_cmp_ge_u32 s14, 16
    s_cbranch_scc1 L_ch_value
    ''')
    gen_score(G)
    a('L_ch_value:')
    gen_value(G)
    a('''L_ch_fail:
    s_mov_b64 exec, 1
    v_mov_b32 v1, 68
    v_mov_b32 v2, 1
    global_atomic_add v1, v2, s[6:7]
L_ch_done:''')
    if opts.get('trace'):
        G.calib(88)
        a(f'''s_waitcnt lgkmcnt(0)
        s_lshl_b32 s16, s38, 2
        s_add_u32 s16, s16, s13
        s_lshl_b32 s16, s16, 6
        s_add_u32 s16, s16, {WS['PX']}
        s_mov_b64 exec, 1
        v_mov_b32 v1, 0''')
        for i,sg in enumerate([72,74,76,78,80,82,84,86,87,88,89]):
            a(f'v_mov_b32 v2, s{sg}\nbuffer_store_dword v2, v1, s[8:11], s16 offen offset:{4*i}\ns_nop 1')
        a('s_mov_b64 exec, -1')
    if prof:
        a(f'''s_memtime s[44:45]
        s_memrealtime s[46:47]
        s_waitcnt lgkmcnt(0)
        s_sub_u32 s44, s44, s40
        s_sub_u32 s46, s46, s42
        s_cmp_lg_u32 s13, {opts.get('pw',0)}
        s_cbranch_scc1 L_ch_end
        s_cmp_lg_u32 s14, 0
        s_cbranch_scc1 L_ch_end
        s_mov_b64 exec, 1
        v_mov_b32 v1, s33
        v_mov_b32 v2, s44
        v_mov_b32 v3, s46
        global_store_dwordx2 v1, v[2:3], s[6:7]''')
        if stamps:
            a('s_cmp_eq_u32 s33, 128\ns_movk_i32 s35, 192\ns_cselect_b32 s34, 144, s35\nv_mov_b32 v1, s34')
            for i in range(0,12,2):
                a(f'v_mov_b32 v2, s{60+i}\nv_mov_b32 v3, s{61+i}\nglobal_store_dwordx2 v1, v[2:3], s[6:7] offset:{i*4}\ns_nop 1')
    a('''s_waitcnt vmcnt(0)
L_ch_end:
    s_endpgm''')

def kdesc(name, vgpr=512, sgpr=100, accum=256):
    return f'''.section .rodata,"a"
.p2align 6
.amdhsa_kernel {name}
  .amdhsa_next_free_vgpr {vgpr}
  .amdhsa_next_free_sgpr {sgpr}
  .amdhsa_accum_offset {accum}
  .amdhsa_group_segment_fixed_size 0
  .amdhsa_kernarg_size 120
  .amdhsa_user_sgpr_count 2
  .amdhsa_user_sgpr_kernarg_segment_ptr 1
  .amdhsa_system_sgpr_workgroup_id_x 1
.end_amdhsa_kernel
.text
'''
if __name__=='__main__':
    for kw in ({},dict(pipe=1),dict(stamps=True,pipe=1)):
        a=Asm()
        gen_chain(a,'chain_kernel',prof=True,**kw)
        t=fix_hazards(a.text(),True)
        for p in check_waitcnt(t)[:20]: print('WAIT?',p)
        src='.amdgcn_target "amdgcn-amd-amdhsa--gfx950"\n.text\n'+t+kdesc('chain_kernel')
        open('chain.s','w').write(src)
        import subprocess
        r=subprocess.run('clang -x assembler -target amdgcn-amd-amdhsa -mcpu=gfx950 -c chain.s -o chain.o',shell=True,capture_output=True,text=True)
        print(r.stderr[:2000] or 'assembled')
```

```python
from asmlib import *
from layout import WS
KA=dict(x=0,mem0=8,Wq=16,Wk=24,Wv=32,Wo=40,w1=64,b1=72,w2=80,b2=88,out=96,dbg=104,ws=112)
SZ=dict(x=1835008,mem0=7168,Wq=448*4096*2,Wk=448*4096*2,Wv=448*4096*2,Wo=4096*448*2,w1=2048*1792*2,b1=3584,w2=2048*1792*2,b2=4096,out=1835008,ws=0x10000000)
def make_srd(a, s, name, tmp):
    a(f'''s_load_dwordx2 s[{tmp}:{tmp+1}], s[0:1], {KA[name]}
    s_waitcnt lgkmcnt(0)
    s_mov_b32 s{s}, s{tmp}
    s_mov_b32 s{s+1}, s{tmp+1}
    s_mov_b32 s{s+2}, {SZ[name]}
    s_mov_b32 s{s+3}, 0x00020000''')
def kheader(a, name):
    a(f'.p2align 8\n.globl {name}\n.type {name},@function\n{name}:')
def kdesc(name, vgpr, sgpr=100, accum=None):
    if accum is None: accum=min(256,(vgpr+3)//4*4)
    return f'''.section .rodata,"a"
.p2align 6
.amdhsa_kernel {name}
  .amdhsa_next_free_vgpr {vgpr}
  .amdhsa_next_free_sgpr {sgpr}
  .amdhsa_accum_offset {accum}
  .amdhsa_group_segment_fixed_size 0
  .amdhsa_kernarg_size 120
  .amdhsa_user_sgpr_count 2
  .amdhsa_user_sgpr_kernarg_segment_ptr 1
  .amdhsa_system_sgpr_workgroup_id_x 1
.end_amdhsa_kernel
.text
'''
LOG2E=1.4426950408889634
import struct
def f2u(x): return struct.unpack('<I',struct.pack('<f',x))[0]
def dpp_red8(a, op, v, t):
    a(f'{op}_dpp v{v}, v{v}, v{v} quad_perm:[1,0,3,2] row_mask:0xf bank_mask:0xf')
    a(f'{op}_dpp v{v}, v{v}, v{v} quad_perm:[2,3,0,1] row_mask:0xf bank_mask:0xf')
    a(f'{op}_dpp v{v}, v{v}, v{v} row_half_mirror row_mask:0xf bank_mask:0xf')
```

```python
import numpy as np
S=2048; D=448; H=16; NSEG=64; F=1792
def pi(pos):
    blk=pos//16; p=pos%16; hi=p//8; v=p%8
    return 16*blk+4*(v//2)+2*hi+v%2
PI=np.array([pi(p) for p in range(D)])
def score_pos(w,t,n):
    g=n//4; b=n%4
    if t<4:
        a=t//2; hi=t%2
        return 112*w+16*g+8*a+4*(b//2)+2*hi+b%2
    if t<6:
        hi=t-4
        return 112*w+64+8*g+4*(b//2)+2*hi+b%2
    return 112*w+96+4*g+b
ROWPOS=np.array([score_pos((R//16)//7,(R//16)%7,R%16) for R in range(D)])
AT_ROWCOL=PI[ROWPOS]
def bt_row(q):
    v=q//448; h=(q%448)//28; cl=q%28
    return h, PI[28*v+cl]
def _al(x,a=4096): return (x+a-1)//a*a
off=0
WS={}
def _alloc(name,n):
    global off
    WS[name]=off; off=_al(off+n)
_alloc('XN',S*D*2)
_alloc('XP',S*D*2)
_alloc('XQ',S*D*2)
_alloc('MEMQ',NSEG*7168)
_alloc('PXM',NSEG*16*32*16)
_alloc('STAT',NSEG*4*32*8)
_alloc('AT',H*D*D*2)
_alloc('BT',H*D*D*2)
_alloc('U',NSEG*16*16*28*32*2+4096)
_alloc('MEM',NSEG*7168)
_alloc('P',NSEG*10240)
_alloc('HINT',4096)
_alloc('Y',NSEG*16*16*28*16+4096)
_alloc('PX',NSEG*16*32*64*2)
_alloc('H',S*D*2)
_alloc('HLT',S*D*2)
_alloc('UT',D*F*2)
_alloc('W1F',S*F*2)
_alloc('W2F',S*F*2)
WS_END=off
def _rp(Rp):
    J=Rp//32; u=(Rp%32)//16; kh=(Rp%16)//8; e=Rp%8
    return 32*J+16*u+8*(e//4)+4*kh+e%4
RQ=np.array([_rp(r) for r in range(D)])
XQ_COL=AT_ROWCOL[RQ]
def frag_layout(rows):
    R,K=rows.shape
    return np.ascontiguousarray(rows.reshape(R//32,32,K//8,8).transpose(0,2,1,3)).reshape(-1)
def xk_image(xn):
    xp=xn[:,PI]
    out=np.empty((64,4,2,1792),xn.dtype)
    for w in range(4):
        for kt in range(2):
            blk=xp.reshape(64,32,448)[:,16*kt:16*kt+16,112*w:112*w+112]
            A=blk[:,:,:64].reshape(64,16,2,4,8)
            out[:,w,kt,0:512]=A[:,:,0].transpose(0,2,1,3).reshape(64,512)
            out[:,w,kt,512:1024]=A[:,:,1].transpose(0,2,1,3).reshape(64,512)
            B=blk[:,:,64:96].reshape(64,16,4,8)
            out[:,w,kt,1024:1536]=B.transpose(0,2,1,3).reshape(64,512)
            C=blk[:,:,96:112].reshape(64,16,4,4)
            out[:,w,kt,1536:1792]=C.transpose(0,2,1,3).reshape(64,256)
    return out.reshape(-1)
def mem_image(mem_nat):
    mp=mem_nat[:,PI]
    return np.ascontiguousarray(mp.reshape(8,56,8).transpose(1,0,2)).reshape(-1)
def memq_image(mem_nat):
    mq=mem_nat[:,XQ_COL]
    return np.ascontiguousarray(mq.reshape(8,56,8).transpose(1,0,2)).reshape(-1)
def mem_unimage(img):
    mp=img.reshape(56,8,8).transpose(1,0,2).reshape(8,448)
    out=np.empty_like(mp); out[:,PI]=mp
    return out
if __name__=='__main__':
    print(WS, WS_END)
    assert sorted(PI)==list(range(448)); assert sorted(ROWPOS)==list(range(448))
```

```python
from common import *
N_AT=112; N_BT=112; N_LN=64; N_T1=224; N_T2=224
NWG=N_AT+N_BT+N_LN+N_T1+N_T2
LDS=40960

def ln_task(a):
    make_srd(a, 12, 'x', 16)
    X=8; F=40; Y=8
    a(f'''
    v_lshrrev_b32 v1, 3, v0            ; row8
    v_and_b32 v2, 7, v0                ; part
    s_lshl_b32 s21, s3, 3
    v_add_u32 v3, s21, v1              ; n32
    s_lshl_b32 s22, s20, 5
    v_add_u32 v4, s22, v3              ; token
    v_mul_u32_u24 v4, 896, v4
    v_mul_u32_u24 v5, 112, v2
    v_add_u32 v4, v4, v5''')
    for i in range(7): a(f'buffer_load_dwordx4 {vr(X+4*i,4)}, v4, s[12:15], 0 offen offset:{16*i}')
    a(f'''
    v_mov_b32 v100, -1
    v_mov_b32 v101, -1
    v_mov_b32 v102, -1
    v_mov_b32 v103, -1
    s_cmp_ge_u32 s20, 63
    s_cbranch_scc1 L_ln_nosent
    s_lshl_b32 s21, s3, 6
    v_add_u32 v6, s21, v0              ; tid
    v_lshlrev_b32 v6, 4, v6            ; tid*16
    s_mul_i32 s21, s20, 7168
    s_add_u32 s21, s21, {WS['MEM']+7168}
    buffer_store_dwordx4 v[100:103], v6, s[8:11], s21 offen
    v_add_u32 v7, 4096, v6
    v_cmp_gt_u32 vcc, 7168, v7
    s_and_saveexec_b64 s[24:25], vcc
    buffer_store_dwordx4 v[100:103], v7, s[8:11], s21 offen
    s_mov_b64 exec, s[24:25]
    s_mul_i32 s21, s20, 10240
    s_add_u32 s21, s21, {WS['P']}
    buffer_store_dwordx4 v[100:103], v6, s[8:11], s21 offen
    buffer_store_dwordx4 v[100:103], v7, s[8:11], s21 offen
    v_add_u32 v7, 8192, v6
    v_cmp_gt_u32 vcc, 10240, v7
    s_and_saveexec_b64 s[24:25], vcc
    buffer_store_dwordx4 v[100:103], v7, s[8:11], s21 offen
    s_mov_b64 exec, s[24:25]
L_ln_nosent:
    s_cmp_lg_u32 s20, 0
    s_cbranch_scc1 L_ln_nohint
    v_mov_b32 v104, 0
    s_lshl_b32 s21, s3, 6
    v_add_u32 v6, s21, v0
    v_lshlrev_b32 v6, 2, v6
    s_mov_b32 s21, {WS['HINT']}
    buffer_store_dword v104, v6, s[8:11], s21 offen
L_ln_nohint:
    s_waitcnt vmcnt(0)''')
    for i in range(28):
        a(f'v_lshlrev_b32 v{F+2*i}, 16, v{X+i}')
        a(f'v_and_b32 v{F+2*i+1}, 0xffff0000, v{X+i}')
    for k in range(4): a(f'v_add_f32 v{96+k}, v{F+k}, v{F+4+k}')
    for i in range(8,56): a(f'v_add_f32 v{96+i%4}, v{96+i%4}, v{F+i}')
    a('v_add_f32 v96, v96, v97\nv_add_f32 v98, v98, v99\nv_add_f32 v96, v96, v98')
    dpp_red8(a,'v_add_f32',96,97)
    a(f'v_mul_f32 v96, {hex(f2u(1/448))}, v96')
    for i in range(56): a(f'v_sub_f32 v{F+i}, v{F+i}, v96')
    for k in range(4): a(f'v_mul_f32 v{96+k}, v{F+k}, v{F+k}')
    for i in range(4,56): a(f'v_fmac_f32 v{96+i%4}, v{F+i}, v{F+i}')
    a('v_add_f32 v96, v96, v97\nv_add_f32 v98, v98, v99\nv_add_f32 v96, v96, v98')
    dpp_red8(a,'v_add_f32',96,97)
    a(f'''v_mov_b32 v97, {hex(f2u(1e-5))}
    v_fmac_f32 v97, {hex(f2u(1/448))}, v96
    v_rsq_f32 v97, v97''')
    for i in range(56): a(f'v_mul_f32 v{F+i}, v{F+i}, v97')
    for i in range(28): a(f'v_cvt_pk_bf16_f32 v{Y+i}, v{F+2*i}, v{F+2*i+1}')
    a(f'''v_mul_u32_u24 v5, {7*512}, v2
    v_lshl_add_u32 v5, v3, 4, v5
    s_mul_i32 s21, s20, 28672
    s_add_u32 s22, s21, {WS['XN']}''')
    for i in range(7): a(f'buffer_store_dwordx4 {vr(Y+4*i,4)}, v5, s[8:11], s22 offen offset:{512*i}')
    a('v_mul_u32_u24 v5, 904, v3\nv_mul_u32_u24 v6, 112, v2\nv_add_u32 v5, v5, v6')
    for k in range(14): a(f'ds_write_b64 v5, {vr(Y+2*k,2)} offset:{8*k}')
    a('s_waitcnt lgkmcnt(0)\ns_barrier')
    gathers(a, False)
    a('s_cmp_lg_u32 s20, 63\ns_cbranch_scc1 L_done\ns_waitcnt vmcnt(0)\ns_barrier')
    make_srd(a, 12, 'mem0', 16)
    a(f'''
    s_lshl_b32 s21, s3, 6
    v_add_u32 v6, s21, v0
    v_lshlrev_b32 v7, 4, v6
    buffer_load_dwordx4 v[8:11], v7, s[12:15], 0 offen
    v_add_u32 v7, 4096, v7
    buffer_load_dwordx4 v[12:15], v7, s[12:15], 0 offen
    ; LDS address: piece p -> row p/56, col piece p%56
    s_mov_b32 s21, 0x4924925
    v_mul_hi_u32 v16, v6, s21
    v_mul_u32_u24 v17, 56, v16
    v_sub_u32 v17, v6, v17
    v_mul_u32_u24 v16, 904, v16
    v_lshl_add_u32 v16, v17, 4, v16
    v_add_u32 v6, 256, v6
    v_mul_hi_u32 v18, v6, s21
    v_mul_u32_u24 v19, 56, v18
    v_sub_u32 v19, v6, v19
    v_mul_u32_u24 v18, 904, v18
    v_lshl_add_u32 v18, v19, 4, v18
    s_waitcnt vmcnt(0)
    ds_write_b64 v16, v[8:9]
    ds_write_b64 v16, v[10:11] offset:8
    v_cmp_gt_u32 vcc, 448, v6
    s_and_saveexec_b64 s[24:25], vcc
    ds_write_b64 v18, v[12:13]
    ds_write_b64 v18, v[14:15] offset:8
    s_mov_b64 exec, s[24:25]
    s_waitcnt lgkmcnt(0)
    s_barrier''')
    gathers(a, True)
    a('s_branch L_done')

def gathers(a, mem):
    T=8
    if not mem:
        a(f'''v_and_b32 v1, 15, v0
        v_lshrrev_b32 v2, 4, v0            ; g
        v_mul_u32_u24 v3, 904, v1
        s_mul_i32 s21, s3, 224
        v_add_u32 v3, s21, v3
        v_lshrrev_b32 v4, 1, v2            ; g/2
        v_and_b32 v5, 1, v2                ; g%2
        v_lshl_add_u32 v6, v4, 5, v3
        v_lshl_add_u32 v6, v5, 2, v6       ; base A/B
        v_lshl_add_u32 v7, v5, 4, v3
        v_lshl_add_u32 v7, v4, 2, v7
        v_lshlrev_b32 v4, 4, v0            ; l*16
        v_lshlrev_b32 v5, 3, v0            ; l*8
        s_mul_i32 s21, s20, 28672
        s_mul_i32 s22, s3, 7168
        s_add_u32 s21, s21, s22
        s_add_u32 s21, s21, {WS['XP']}''')
        r=T
        for kt in range(2):
            for p,c0 in enumerate((0,4,8)):
                for j in range(4): a(f'ds_read_b32 v{r+j}, v6 offset:{kt*16*904+16*c0+8*j}')
                a(f's_waitcnt lgkmcnt(0)\ns_add_u32 s22, s21, {kt*3584+p*1024}\nbuffer_store_dwordx4 {vr(r,4)}, v4, s[8:11], s22 offen')
                r+=4
            for j in range(2): a(f'ds_read_b32 v{r+j}, v7 offset:{kt*16*904+192+8*j}')
            a(f's_waitcnt lgkmcnt(0)\ns_add_u32 s22, s21, {kt*3584+3072}\nbuffer_store_dwordx2 {vr(r,2)}, v5, s[8:11], s22 offen')
            r+=2
    else:
        a(f'''v_and_b32 v1, 7, v0
        v_lshrrev_b32 v2, 3, v0            ; cq
        v_mul_u32_u24 v3, 904, v1
        v_lshrrev_b32 v4, 1, v2
        v_and_b32 v5, 1, v2
        v_lshl_add_u32 v6, v4, 5, v3
        v_lshl_add_u32 v6, v5, 2, v6
        s_lshl_b32 s21, s3, 7
        v_add_u32 v6, s21, v6              ; + 128*w
        v_lshlrev_b32 v4, 7, v2
        v_lshl_add_u32 v4, v1, 4, v4       ; cq*128 + r*16
        s_lshl_b32 s21, s3, 10
        s_add_u32 s21, s21, {WS['MEM']}''')
        for j in range(4): a(f'ds_read_b32 v{T+j}, v6 offset:{8*j}')
        a(f's_waitcnt lgkmcnt(0)\nbuffer_store_dwordx4 {vr(T,4)}, v4, s[8:11], s21 offen')
        a('s_cmp_eq_u32 s3, 3\ns_cbranch_scc1 L_mem_skip')
        for j in range(4): a(f'ds_read_b32 v{T+4+j}, v6 offset:{512+8*j}')
        a(f's_waitcnt lgkmcnt(0)\ns_add_u32 s22, s21, 4096\nbuffer_store_dwordx4 {vr(T+4,4)}, v4, s[8:11], s22 offen')
        a('L_mem_skip:')
    a(f'''v_and_b32 v1, 31, v0
    v_lshrrev_b32 v2, 5, v0            ; kh
    v_mul_u32_u24 v3, 904, v1
    s_mul_i32 s21, s3, 224
    v_add_u32 v3, s21, v3
    v_lshl_add_u32 v60, v2, 5, v3
    v_lshl_add_u32 v61, v2, 2, v3
    v_lshl_add_u32 v62, v2, 4, v3''')
    if not mem:
        a(f'''v_lshlrev_b32 v4, 4, v0
        s_mul_i32 s21, s20, 28672
        s_mul_i32 s22, s3, 7168
        s_add_u32 s21, s21, s22
        s_add_u32 s21, s21, {WS['XQ']}''')
        step=1024
    else:
        a(f'''v_lshlrev_b32 v4, 7, v2
        v_lshl_add_u32 v4, v1, 4, v4
        s_mul_i32 s21, s3, {7*256}
        s_add_u32 s21, s21, {WS['MEMQ']}
        s_mov_b32 exec_lo, 0xff
        s_mov_b32 exec_hi, 0xff''')
        step=256
    r=64
    for t in range(7):
        for j in range(4):
            if t<4:
                aa=t//2; hi=t%2; col=32*(j//2)+8*(j%2)+4*hi+2*aa; b=60
            elif t<6:
                hi=t-4; col=64+16*(j//2)+8*(j%2)+4*hi; b=61
            else:
                col=96+4*(j%2)+2*(j//2); b=62
            a(f'ds_read_b32 v{r+j}, v{b} offset:{col*2}')
        a(f's_waitcnt lgkmcnt(0)\ns_add_u32 s22, s21, {t*step}\nbuffer_store_dwordx4 {vr(r,4)}, v4, s[8:11], s22 offen')
        r+=4
    if mem: a('s_mov_b64 exec, -1')

def gemm_core(a, srdA, is_bt):
    D=100; A0=8; A1=36; B=64
    for i in range(112): a(f'v_mov_b32 v{D+i}, 0')
    def loadA(buf,ks):
        for it in range(7):
            a(f's_add_u32 s22, s24, {it*16*8192}')
            a(f'buffer_load_dwordx4 {vr(buf+4*it,4)}, v4, s[{srdA}:{srdA+3}], s22 offen offset:{64*ks}')
    def loadB(buf,ks):
        for rt in range(4):
            if not is_bt: a(f'ds_read_b128 {vr(buf+4*rt,4)}, v5 offset:{rt*16*544+64*ks}')
            else:
                a(f'ds_read_b64_tr_b16 {vr(buf+4*rt,2)}, v5 offset:{ks*32*144+rt*32}')
                a(f'ds_read_b64_tr_b16 {vr(buf+4*rt+2,2)}, v5 offset:{ks*32*144+4*144+rt*32}')
    return D,A0,A1,B,loadA,loadB

def gemm_run(a, D,A0,A1,B,loadA,loadB, preloaded):
    nb = 8
    for ks in range(8):
        cur=A0 if ks%2==0 else A1; nxt=A1 if ks%2==0 else A0
        Bc=B+16*(ks%2)
        if ks+1<8: loadA(nxt,ks+1)
        loadB(Bc,ks)
        a(f's_waitcnt vmcnt({7 if ks+1<8 else 0}) lgkmcnt(0)')
        for it in range(7):
            for rt in range(4):
                a(f'v_mfma_f32_16x16x32_bf16 {vr(D+4*(it*4+rt),4)}, {vr(cur+4*it,4)}, {vr(Bc+4*rt,4)}, {vr(D+4*(it*4+rt),4)}')

def at_task(a):
    make_srd(a, 12, 'Wq', 16); make_srd(a, 16, 'Wk', 22)
    a(f'''
    s_lshr_b32 s21, s20, 3                    ; k = id/8
    s_mul_hi_u32 s26, s21, {(2**32+6)//7}     ; k/7
    s_mul_i32 s22, s26, 7
    s_sub_u32 s27, s21, s22                    ; rb = k%7
    s_lshl_b32 s26, s26, 3
    s_and_b32 s22, s20, 7
    s_add_u32 s26, s26, s22                    ; h = id%8 + 8*(k/7)
    s_lshl_b32 s21, s27, 2
    s_add_u32 s21, s21, s3                    ; tau
    s_mul_hi_u32 s28, s21, {(2**32+6)//7}
    s_mul_i32 s29, s28, 7
    s_sub_u32 s29, s21, s29                    ; t
    v_lshrrev_b32 v1, 2, v0                    ; n16
    v_lshrrev_b32 v2, 2, v1                    ; g
    v_and_b32 v3, 3, v1                        ; b
    v_lshrrev_b32 v6, 1, v3                    ; b/2
    v_and_b32 v7, 1, v3                        ; b%2
    v_lshrrev_b32 v8, 1, v2                    ; g/2
    v_and_b32 v9, 1, v2                        ; g%2
    s_mul_i32 s30, s28, 112
    s_cmp_lt_u32 s29, 4
    s_cbranch_scc1 L_at_A
    s_cmp_lt_u32 s29, 6
    s_cbranch_scc1 L_at_B
    ; C: 96 + 8(g%2) + 4(b/2) + 2(g/2) + b%2
    v_lshl_add_u32 v10, v9, 3, v7
    v_lshl_add_u32 v10, v6, 2, v10
    v_lshl_add_u32 v10, v8, 1, v10
    s_add_u32 s30, s30, 96
    s_branch L_at_j
L_at_B:
    ; 64 + 16(g/2) + 2(g%2) + 8(b/2) + 4hi + b%2
    v_lshl_add_u32 v10, v8, 4, v7
    v_lshl_add_u32 v10, v9, 1, v10
    v_lshl_add_u32 v10, v6, 3, v10
    s_sub_u32 s31, s29, 4
    s_lshl_b32 s31, s31, 2
    s_add_u32 s30, s30, s31
    s_add_u32 s30, s30, 64
    s_branch L_at_j
L_at_A:
    ; 16g + 8(b/2) + b%2 + 4hi + 2a
    v_lshl_add_u32 v10, v2, 4, v7
    v_lshl_add_u32 v10, v6, 3, v10
    s_and_b32 s31, s29, 1
    s_lshl_b32 s31, s31, 2
    s_add_u32 s30, s30, s31
    s_lshr_b32 s31, s29, 1
    s_lshl_b32 s31, s31, 1
    s_add_u32 s30, s30, s31
L_at_j:
    v_add_u32 v10, s30, v10                    ; j
    v_lshlrev_b32 v10, 13, v10                 ; j*8192
    v_and_b32 v11, 3, v0
    v_lshl_add_u32 v10, v11, 4, v10
    s_lshl_b32 s31, s26, 9                     ; h*512''')
    for k in range(8): a(f'buffer_load_dwordx4 {vr(12+4*k,4)}, v10, s[16:19], s31 offen offset:{64*k}')
    a(f'''s_lshl_b32 s21, s3, 4
    v_add_u32 v1, s21, v1
    v_mul_u32_u24 v1, 544, v1
    v_lshl_add_u32 v1, v11, 4, v1''')
    D,A0,A1,B,loadA,loadB=gemm_core(a,12,False)
    a(f'''v_and_b32 v2, 15, v0
    v_lshrrev_b32 v3, 4, v0
    v_lshlrev_b32 v4, 13, v2
    v_lshl_add_u32 v4, v3, 4, v4
    s_mul_i32 s24, s3, {112*8192}
    s_add_u32 s24, s24, s31
    v_mul_u32_u24 v5, 544, v2
    v_lshl_add_u32 v5, v3, 4, v5
    s_waitcnt vmcnt(0)''')
    for k in range(8): a(f'ds_write_b128 v1, {vr(12+4*k,4)} offset:{64*k}')
    loadA(A0,0)
    a('s_waitcnt lgkmcnt(0)\ns_barrier')
    gemm_run(a,D,A0,A1,B,loadA,loadB,True)
    c=hex(f2u(LOG2E/16))
    a(f'''v_lshrrev_b32 v6, 1, v3
    v_lshlrev_b32 v6, 9, v6
    v_lshl_add_u32 v6, v2, 4, v6
    v_and_b32 v7, 1, v3
    v_lshl_add_u32 v6, v7, 3, v6               ; (g/2)*512 + n16*16 + (g%2)*8
    s_mul_i32 s21, s26, {14*56*512}
    s_mul_i32 s22, s27, {2*56*512}
    s_add_u32 s21, s21, s22
    s_mul_i32 s22, s3, {14*512}
    s_add_u32 s21, s21, s22
    s_add_u32 s21, s21, {WS['AT']}
    s_mov_b32 s23, {c}''')
    for it in range(7):
        for rt in range(4):
            d=D+4*(it*4+rt)
            for q in range(4): a(f'v_mul_f32 v{d+q}, s23, v{d+q}')
            a(f'v_cvt_pk_bf16_f32 v{d}, v{d}, v{d+1}\nv_cvt_pk_bf16_f32 v{d+1}, v{d+2}, v{d+3}')
            a(f's_add_u32 s22, s21, {(rt//2)*56*512+2*it*512+(rt%2)*256}')
            a(f'buffer_store_dwordx2 {vr(d,2)}, v6, s[8:11], s22 offen')
    a('s_branch L_done')

def bt_task(a):
    make_srd(a, 12, 'Wv', 16); make_srd(a, 16, 'Wo', 22)
    a(f'''
    s_lshr_b32 s21, s20, 3                    ; k = id/8
    s_mul_hi_u32 s26, s21, {(2**32+6)//7}     ; k/7
    s_mul_i32 s22, s26, 7
    s_sub_u32 s27, s21, s22                    ; rb = k%7
    s_lshl_b32 s26, s26, 3
    s_and_b32 s22, s20, 7
    s_add_u32 s26, s26, s22                    ; h = id%8 + 8*(k/7)
    v_lshrrev_b32 v1, 3, v0
    v_and_b32 v11, 7, v0
    s_lshl_b32 s21, s3, 6
    v_add_u32 v1, s21, v1                      ; e (k=0)
    v_mul_u32_u24 v10, 896, v1
    v_lshl_add_u32 v10, v11, 4, v10
    s_mul_i32 s31, s26, {256*896}
    s_lshl_b32 s21, s27, 7
    s_add_u32 s31, s31, s21''')
    for k in range(8):
        a(f's_add_u32 s22, s31, {k*8*896}\nbuffer_load_dwordx4 {vr(12+4*k,4)}, v10, s[16:19], s22 offen')
    a('v_mul_u32_u24 v1, 144, v1\nv_lshl_add_u32 v1, v11, 4, v1')
    D,A0,A1,B,loadA,loadB=gemm_core(a,12,True)
    a(f'''v_and_b32 v2, 15, v0
    v_lshrrev_b32 v3, 4, v0
    v_lshlrev_b32 v4, 13, v2
    v_lshl_add_u32 v4, v3, 4, v4
    s_mul_i32 s24, s3, {112*8192}
    s_lshl_b32 s21, s26, 9
    s_add_u32 s24, s24, s21
    v_lshrrev_b32 v6, 2, v2
    v_lshl_add_u32 v6, v3, 3, v6
    v_mul_u32_u24 v5, 144, v6
    v_and_b32 v6, 3, v2
    v_lshl_add_u32 v5, v6, 3, v5
    s_waitcnt vmcnt(0)''')
    for k in range(8): a(f'ds_write_b128 v1, {vr(12+4*k,4)} offset:{k*8*144}')
    loadA(A0,0)
    a('s_waitcnt lgkmcnt(0)\ns_barrier')
    gemm_run(a,D,A0,A1,B,loadA,loadB,True)
    a(f'''v_bfe_u32 v6, v2, 1, 1
    v_lshlrev_b32 v6, 3, v6
    v_lshrrev_b32 v7, 2, v2
    v_lshl_add_u32 v6, v7, 1, v6
    v_and_b32 v7, 1, v2
    v_add_u32 v6, v6, v7                       ; p16
    s_lshl_b32 s21, s27, 6
    v_add_u32 v6, s21, v6
    s_mul_i32 s23, s26, 28
    s_mov_b32 s25, {(2**32+27)//28}
    v_lshrrev_b32 v7, 1, v3
    v_lshlrev_b32 v7, 9, v7
    v_and_b32 v8, 1, v3
    v_lshl_add_u32 v7, v8, 3, v7               ; (g/2)*512 + (g%2)*8''')
    for rt in range(4):
        a(f'''v_add_u32 v8, {16*rt}, v6
        v_mul_hi_u32 v9, v8, s25               ; v = pos/28
        v_mul_u32_u24 v10, 28, v9
        v_sub_u32 v8, v8, v10                  ; cl
        v_mul_u32_u24 v9, 448, v9
        v_add_u32 v8, v8, v9
        v_add_u32 v8, s23, v8                  ; q
        v_lshrrev_b32 v9, 5, v8
        v_mul_u32_u24 v9, {56*512}, v9
        v_and_b32 v8, 31, v8
        v_lshl_add_u32 v8, v8, 4, v9
        v_add_u32 v{12+rt}, v8, v7''')
    a(f's_mul_i32 s21, s3, {14*512}\ns_add_u32 s21, s21, {WS["BT"]}')
    for it in range(7):
        a(f's_add_u32 s22, s21, {2*it*512}')
        for rt in range(4):
            d=D+4*(it*4+rt)
            a(f'v_cvt_pk_bf16_f32 v{d}, v{d}, v{d+1}\nv_cvt_pk_bf16_f32 v{d+1}, v{d+2}, v{d+3}')
            a(f'buffer_store_dwordx2 {vr(d,2)}, v{12+rt}, s[8:11], s22 offen')
    a('s_branch L_done')

def tr_task(a, name, K, N, dst, tag):
    nbn=N//256
    make_srd(a, 12, name, 16)
    a(f'''
    s_mul_hi_u32 s26, s20, {(2**32+nbn-1)//nbn}    ; kb
    s_mul_i32 s21, s26, {nbn}
    s_sub_u32 s27, s20, s21                        ; nb
    v_lshrrev_b32 v1, 5, v0
    v_and_b32 v2, 31, v0
    s_lshl_b32 s21, s3, 4
    v_add_u32 v1, s21, v1
    v_mul_u32_u24 v3, {N*2}, v1
    v_lshl_add_u32 v3, v2, 4, v3
    s_mul_i32 s21, s26, {64*N*2}
    s_lshl_b32 s22, s27, 9
    s_add_u32 s21, s21, s22''')
    for k in range(8): a(f's_add_u32 s22, s21, {2*k*N*2}\nbuffer_load_dwordx4 {vr(8+4*k,4)}, v3, s[12:15], s22 offen')
    a('v_mul_u32_u24 v1, 528, v1\nv_lshl_add_u32 v1, v2, 4, v1\ns_waitcnt vmcnt(0)')
    for k in range(8): a(f'ds_write_b128 v1, {vr(8+4*k,4)} offset:{2*k*528}')
    a(f'''s_waitcnt lgkmcnt(0)
    s_barrier
    v_lshrrev_b32 v4, 4, v0
    v_and_b32 v5, 15, v0
    v_lshrrev_b32 v6, 1, v4
    v_lshlrev_b32 v6, 3, v6
    v_lshrrev_b32 v7, 2, v5
    v_add_u32 v6, v6, v7
    v_mul_u32_u24 v6, 528, v6
    v_and_b32 v7, 1, v4
    v_lshl_add_u32 v6, v7, 5, v6
    v_and_b32 v7, 3, v5
    v_lshl_add_u32 v6, v7, 3, v6
    s_lshl_b32 s21, s3, 7
    v_add_u32 v6, s21, v6
    v_lshlrev_b32 v7, 4, v0
    s_lshl_b32 s21, s27, 3
    s_lshl_b32 s22, s3, 1
    s_add_u32 s21, s21, s22
    s_mul_i32 s21, s21, {K//8*512}
    s_lshl_b32 s22, s26, 12
    s_add_u32 s21, s21, s22
    s_add_u32 s21, s21, {WS[dst]}''')
    r=8
    for j in range(2):
        for m in range(4):
            a(f'ds_read_b64_tr_b16 {vr(r,2)}, v6 offset:{m*16*528+j*64}')
            a(f'ds_read_b64_tr_b16 {vr(r+2,2)}, v6 offset:{m*16*528+4*528+j*64}')
            a(f's_waitcnt lgkmcnt(0)\ns_add_u32 s22, s21, {j*(K//8)*512+m*1024}\nbuffer_store_dwordx4 {vr(r,4)}, v7, s[8:11], s22 offen')
            r+=4
    a('s_branch L_done')

def gen_prep(a, name):
    kheader(a,name)
    a(f'''s_cmp_ge_u32 s2, {NWG}
    s_cbranch_scc1 L_done
    v_lshrrev_b32 v1, 6, v0
    v_and_b32 v0, 63, v0
    v_readfirstlane_b32 s3, v1''')
    make_srd(a, 8, 'ws', 16)
    a(f'''s_mov_b32 s20, s2
    s_cmp_lt_u32 s20, {N_AT}
    s_cbranch_scc1 L_at
    s_sub_u32 s20, s20, {N_AT}
    s_cmp_lt_u32 s20, {N_BT}
    s_cbranch_scc1 L_bt
    s_sub_u32 s20, s20, {N_BT}
    s_cmp_lt_u32 s20, {N_LN}
    s_cbranch_scc1 L_ln
    s_sub_u32 s20, s20, {N_LN}
    s_cmp_lt_u32 s20, {N_T1}
    s_cbranch_scc1 L_t1
    s_sub_u32 s20, s20, {N_T1}
    s_branch L_t2
L_at:''')
    at_task(a)
    a('L_bt:'); bt_task(a)
    a('L_ln:'); ln_task(a)
    a('L_t1:'); tr_task(a,'w1',2048,1792,'W1F','t1')
    a('L_t2:'); tr_task(a,'w2',1792,2048,'W2F','t2')
    a('L_done:\ns_waitcnt vmcnt(0)\ns_endpgm')
if __name__=='__main__':
    import subprocess
    a=Asm(); gen_prep(a,'prep_kernel')
    t=fix_hazards(a.text(),True)
    for p in check_waitcnt(t)[:20]: print('WAIT?',p)
    open('prep.s','w').write('.amdgcn_target "amdgcn-amd-amdhsa--gfx950"\n.text\n'+t+kdesc('prep_kernel',216))
    print(subprocess.run('clang -x assembler -target amdgcn-amd-amdhsa -mcpu=gfx950 -c prep.s -o prep.o',shell=True,capture_output=True,text=True).stderr[:3000] or 'assembled')
```

```python
from common import *

def prolog(a, name, nwg, done):
    kheader(a,name)
    a(f'''s_cmp_ge_u32 s2, {nwg}
    s_cbranch_scc1 {done}
    v_lshrrev_b32 v1, 6, v0
    v_and_b32 v0, 63, v0
    v_readfirstlane_b32 s3, v1''')
    make_srd(a, 8, 'ws', 16)

LDS_V=40960+32*116*4
def gen_v(a, name):
    prolog(a,name,256,'L_v_done')
    make_srd(a, 12, 'x', 16)
    vL16=1; vPa=2; vPm=3; vUo=4; vW0=5; vW1=6
    D=8; A=24; U=40
    a(f'''
    s_lshr_b32 s20, s2, 2            ; segment s
    s_and_b32 s21, s2, 3             ; q'
    s_lshl_b32 s24, s21, 2
    s_add_u32 s24, s24, s3           ; v
    v_lshlrev_b32 v{vL16}, 4, v0
    v_and_b32 v200, 15, v0           ; n16 / t16
    v_lshrrev_b32 v201, 4, v0        ; g
    v_lshlrev_b32 v{vPa}, 6, v200
    v_lshl_add_u32 v{vPa}, v201, 4, v{vPa}
    v_lshlrev_b32 v{vPm}, 9, v201
    v_lshl_add_u32 v{vPm}, v200, 4, v{vPm}
    s_lshl_b32 s25, s20, 15
    s_add_u32 s25, s25, {WS['PX']}   ; PX + s*16*2048
    s_lshl_b32 s26, s20, 13
    s_add_u32 s26, s26, {WS['PXM']}  ; PXM + s*16*512''')
    a('s_lshl_b32 s27, s3, 13\ns_add_u32 s27, s27, s25\ns_lshl_b32 s28, s3, 13')
    for k in range(8):
        hh=k//2; mt=k%2
        a(f's_add_u32 m0, s28, {k*1024}\ns_add_u32 s23, s27, {hh*2048+mt*1024}\nbuffer_load_dwordx4 v{vPa}, s[8:11], s23 offen lds')
    a('s_lshl_b32 s27, s3, 11\ns_add_u32 s27, s27, s26\ns_lshl_b32 s28, s3, 11\ns_add_u32 s28, s28, 32768')
    for mt in range(2):
        a(f's_add_u32 m0, s28, {mt*1024}\ns_add_u32 s23, s27, {mt*256}\nbuffer_load_dwordx4 v{vPm}, s[8:11], s23 offen lds')
    a(f'''s_lshl_b32 s27, s20, 4
    s_add_u32 s27, s27, s24
    s_mul_i32 s28, s27, {16*1792}
    s_add_u32 s28, s28, {WS['U']}
    s_mul_i32 s29, s27, {16*28*16}
    s_add_u32 s29, s29, {WS['Y']}
    v_mul_u32_u24 v{vUo}, 28, v201
    v_add_u32 v{vUo}, v{vUo}, v200
    v_lshlrev_b32 v{vUo}, 4, v{vUo}''')
    for h in range(16):
        for nt in range(2):
            a(f's_add_u32 s23, s28, {h*1792+nt*1024}\nbuffer_load_dwordx4 {vr(U+8*h+4*nt,4)}, v{vPa}, s[8:11], s23 offen')
    for hg in range(4):
        for nt in range(2):
            a(f's_add_u32 s23, s29, {hg*4*448+nt*256}\nbuffer_load_dwordx4 {vr(U+128+8*hg+4*nt,4)}, v{vUo}, s[8:11], s23 offen')
    a(f'''s_mul_i32 s27, s24, 28
    s_mul_i32 s30, s21, 112''')
    for nt in range(2):
        d=vW0+nt
        a(f'''v_add_u32 v202, {16*nt}, v200
        v_min_u32 v202, 27, v202
        v_add_u32 v202, s27, v202             ; pos
        v_and_b32 v203, 15, v202              ; p
        v_sub_u32 v202, v202, v203            ; 16*blk
        v_lshrrev_b32 v204, 3, v203           ; hi
        v_and_b32 v205, 7, v203               ; vv
        v_lshrrev_b32 v206, 1, v205
        v_lshl_add_u32 v202, v206, 2, v202
        v_lshl_add_u32 v202, v204, 1, v202
        v_and_b32 v205, 1, v205
        v_add_u32 v202, v202, v205
        v_subrev_u32 v202, s30, v202
        v_lshlrev_b32 v202, 2, v202
        v_mul_u32_u24 v203, {4*116*4}, v201   ; token 4g
        v_add_u32 v{d}, v202, v203
        v_add_u32 v{d}, 40960, v{d}''')
    for i in range(16): a(f'v_mov_b32 v{D+i}, 0')
    a('s_waitcnt vmcnt(40)\ns_barrier')
    def aread(k):
        b=A+8*(k%2)
        off = k*2048 if k<16 else 32768+(k-16)*2048
        a(f'ds_read_b128 {vr(b,4)}, v{vL16} offset:{off}\nds_read_b128 {vr(b+4,4)}, v{vL16} offset:{off+1024}')
    aread(0)
    for k in range(20):
        if k+1<20: aread(k+1)
        a(f's_waitcnt vmcnt({38-2*k}) lgkmcnt({2 if k+1<20 else 0})')
        b=A+8*(k%2); u=U+8*k
        for mt in range(2):
            for nt in range(2):
                d=D+8*mt+4*nt
                a(f'v_mfma_f32_16x16x32_bf16 {vr(d,4)}, {vr(b+4*mt,4)}, {vr(u+4*nt,4)}, {vr(d,4)}')
    for mt in range(2):
        for q in range(4): a(f'ds_write_b32 v{vW0}, v{D+8*mt+q} offset:{(16*mt+q)*116*4}')
    a('v_cmp_gt_u32 vcc, 12, v200\ns_and_saveexec_b64 s[30:31], vcc')
    for mt in range(2):
        for q in range(4): a(f'ds_write_b32 v{vW1}, v{D+8*mt+4+q} offset:{(16*mt+q)*116*4}')
    a('s_mov_b64 exec, s[30:31]')
    a(f'''s_lshl_b32 s27, s3, 3
    v_lshrrev_b32 v40, 3, v0
    v_add_u32 v40, s27, v40            ; token
    v_and_b32 v41, 7, v0               ; part
    s_lshl_b32 s27, s20, 5
    v_add_u32 v42, s27, v40
    v_mul_u32_u24 v42, 896, v42
    v_mul_u32_u24 v43, 28, v41
    v_add_u32 v42, v42, v43
    s_mul_i32 s27, s21, 224
    v_add_u32 v42, s27, v42
    buffer_load_dwordx4 v[44:47], v42, s[12:15], 0 offen
    buffer_load_dwordx3 v[48:50], v42, s[12:15], 0 offen offset:16
    v_mul_u32_u24 v43, {116*4}, v40
    v_mul_u32_u24 v51, 56, v41
    v_add_u32 v43, v43, v51
    v_add_u32 v43, 40960, v43
    s_waitcnt lgkmcnt(0)
    s_barrier''')
    for k in range(7): a(f'ds_read_b64 {vr(52+2*k,2)}, v43 offset:{8*k}')
    a('s_waitcnt vmcnt(0) lgkmcnt(0)')
    for k in range(7):
        a(f'''v_lshlrev_b32 v70, 16, v{44+k}
        v_and_b32 v71, 0xffff0000, v{44+k}
        v_add_f32 v{52+2*k}, v{52+2*k}, v70
        v_add_f32 v{53+2*k}, v{53+2*k}, v71
        v_cvt_pk_bf16_f32 v{72+k}, v{52+2*k}, v{53+2*k}''')
    a(f'''s_mov_b32 s27, {WS['H']}
    buffer_store_dwordx4 v[72:75], v42, s[8:11], s27 offen
    buffer_store_dwordx3 v[76:78], v42, s[8:11], s27 offen offset:16
    v_mov_b32 v80, 0
    v_mov_b32 v81, 0''')
    for k in range(7):
        a(f'''v_lshlrev_b32 v70, 16, v{72+k}
        v_and_b32 v71, 0xffff0000, v{72+k}
        v_add_f32 v80, v80, v70
        v_fmac_f32 v81, v70, v70
        v_add_f32 v80, v80, v71
        v_fmac_f32 v81, v71, v71''')
    dpp_red8(a,'v_add_f32',80,82); dpp_red8(a,'v_add_f32',81,82)
    a(f'''; STAT[s][q'][token][2]
    s_lshl_b32 s27, s20, 2
    s_add_u32 s27, s27, s21
    s_lshl_b32 s27, s27, 8
    s_add_u32 s27, s27, {WS['STAT']}
    v_lshlrev_b32 v82, 3, v40
    v_cmp_eq_u32 vcc, 0, v41
    s_and_saveexec_b64 s[30:31], vcc
    buffer_store_dwordx2 v[80:81], v82, s[8:11], s27 offen
    s_mov_b64 exec, s[30:31]
L_v_done:
    s_waitcnt vmcnt(0)
    s_endpgm''')

LDS_L=32*904
def gen_ln2(a, name):
    prolog(a,name,64,'L_l_done')
    a(f'''
    v_lshrrev_b32 v1, 3, v0
    v_and_b32 v2, 7, v0                ; part
    s_lshl_b32 s21, s3, 3
    v_add_u32 v3, s21, v1
    s_lshl_b32 s22, s2, 5
    v_add_u32 v4, s22, v3
    v_mul_u32_u24 v4, 896, v4
    v_mul_u32_u24 v5, 112, v2
    v_add_u32 v4, v4, v5
    s_mov_b32 s21, {WS['H']}''')
    for i in range(7): a(f'buffer_load_dwordx4 {vr(8+4*i,4)}, v4, s[8:11], s21 offen offset:{16*i}')
    a(f's_lshl_b32 s21, s2, 10\ns_add_u32 s21, s21, {WS["STAT"]}\nv_lshlrev_b32 v6, 3, v3')
    for q in range(4): a(f'buffer_load_dwordx2 {vr(96+2*q,2)}, v6, s[8:11], s21 offen offset:{256*q}')
    a(f'''s_waitcnt vmcnt(0)
    v_add_f32 v96, v96, v98
    v_add_f32 v100, v100, v102
    v_add_f32 v97, v97, v99
    v_add_f32 v101, v101, v103
    v_add_f32 v96, v96, v100
    v_add_f32 v97, v97, v101
    v_mul_f32 v96, {hex(f2u(1/448))}, v96       ; mean
    v_mul_f32 v97, {hex(f2u(1/448))}, v97       ; E[x^2]
    v_fma_f32 v97, -v96, v96, v97
    v_max_f32 v97, 0, v97
    v_add_f32 v97, {hex(f2u(1e-5))}, v97
    v_rsq_f32 v97, v97''')
    for i in range(28):
        a(f'''v_lshlrev_b32 v40, 16, v{8+i}
        v_and_b32 v41, 0xffff0000, v{8+i}
        v_sub_f32 v40, v40, v96
        v_sub_f32 v41, v41, v96
        v_mul_f32 v40, v40, v97
        v_mul_f32 v41, v41, v97
        v_cvt_pk_bf16_f32 v{8+i}, v40, v41''')
    a('v_mul_u32_u24 v5, 904, v3\nv_mul_u32_u24 v6, 112, v2\nv_add_u32 v5, v5, v6')
    for k in range(14): a(f'ds_write_b64 v5, {vr(8+2*k,2)} offset:{8*k}')
    a(f'''s_waitcnt lgkmcnt(0)
    s_barrier
    v_lshrrev_b32 v4, 4, v0
    v_and_b32 v5, 15, v0
    v_lshrrev_b32 v6, 1, v4
    v_lshlrev_b32 v6, 3, v6
    v_lshrrev_b32 v7, 2, v5
    v_add_u32 v6, v6, v7
    v_mul_u32_u24 v6, 904, v6
    v_and_b32 v7, 1, v4
    v_lshl_add_u32 v6, v7, 5, v6
    v_and_b32 v7, 3, v5
    v_lshl_add_u32 v6, v7, 3, v6
    v_lshlrev_b32 v7, 4, v0
    s_lshl_b32 s21, s3, 6
    v_add_u32 v6, s21, v6
    s_mul_i32 s21, s3, {256*512}
    s_lshl_b32 s22, s2, 11
    s_add_u32 s21, s21, s22
    s_add_u32 s21, s21, {WS['HLT']}''')
    r=8
    for j in range(4):
        if j==3: a('s_cmp_ge_u32 s3, 2\ns_cbranch_scc1 L_l_done')
        for m in range(2):
            a(f'ds_read_b64_tr_b16 {vr(r,2)}, v6 offset:{m*16*904+j*256}')
            a(f'ds_read_b64_tr_b16 {vr(r+2,2)}, v6 offset:{m*16*904+4*904+j*256}')
            a(f's_waitcnt lgkmcnt(0)\ns_add_u32 s22, s21, {j*4*256*512+m*1024}\nbuffer_store_dwordx4 {vr(r,4)}, v7, s[8:11], s22 offen')
            r+=4
    a('L_l_done:\ns_waitcnt vmcnt(0)\ns_endpgm')

LDS_G=65536
def splitk_core(a, nks, sA, sB, strideA, strideB, depth=6):
    D=100; R=4; vL16=1
    def ld(ks):
        b=R+16*(ks%depth)
        for i in range(2):
            a(f's_add_u32 s23, s{sA}, {i*strideA+ks*1024}\nbuffer_load_dwordx4 {vr(b+4*i,4)}, v{vL16}, s[8:11], s23 offen')
            a(f's_add_u32 s23, s{sB}, {i*strideB+ks*1024}\nbuffer_load_dwordx4 {vr(b+8+4*i,4)}, v{vL16}, s[8:11], s23 offen')
    for ks in range(min(depth,nks)): ld(ks)
    for ks in range(nks):
        rem=min(depth-1, nks-1-ks)
        a(f's_waitcnt vmcnt({4*rem})')
        b=R+16*(ks%depth)
        for i in range(2):
            for j in range(2):
                d=D+16*(2*i+j); c='0' if ks==0 else vr(d,16)
                a(f'v_mfma_f32_32x32x16_bf16 {vr(d,16)}, {vr(b+4*i,4)}, {vr(b+8+4*j,4)}, {c}')
        if ks+depth<nks: ld(ks+depth)
    a(f's_nop 7\ns_nop 7\ns_lshl_b32 s21, s3, 14\nv_add_u32 v2, s21, v{vL16}')
    for t in range(4):
        for k in range(4): a(f'ds_write_b128 v2, {vr(D+16*t+4*k,4)} offset:{t*4096+k*1024}')
    a(f's_waitcnt lgkmcnt(0)\ns_barrier\ns_lshl_b32 s21, s3, 12\nv_add_u32 v2, s21, v{vL16}')
    for w in range(4):
        dst=D if w==0 else 4
        for k in range(4): a(f'ds_read_b128 {vr(dst+4*k,4)}, v2 offset:{w*16384+k*1024}')
        if w>0:
            a('s_waitcnt lgkmcnt(0)')
            for k in range(16): a(f'v_add_f32 v{D+k}, v{D+k}, v{4+k}')
    return D

def gen_g1(a, name):
    prolog(a,name,224,'L_g1_done')
    make_srd(a, 12, 'b1', 16)
    a(f'''
    s_and_b32 s20, s2, 7
    s_lshr_b32 s21, s2, 3
    s_mul_hi_u32 s22, s21, {(2**32+6)//7}
    s_mul_i32 s24, s22, 7
    s_sub_u32 s25, s21, s24           ; dt2
    s_lshl_b32 s22, s22, 3
    s_add_u32 s24, s22, s20           ; ft
    s_cmp_ge_u32 s24, 28
    s_cbranch_scc1 L_g1_done
    v_lshlrev_b32 v1, 4, v0
    s_mul_i32 s26, s24, {2*256*512}
    s_lshl_b32 s21, s3, 15            ; w*32 ksteps*1024
    s_add_u32 s26, s26, s21
    s_add_u32 s26, s26, {WS['W1F']}
    s_mul_i32 s27, s25, {2*256*512}
    s_add_u32 s27, s27, s21
    s_add_u32 s27, s27, {WS['HLT']}''')
    D=splitk_core(a,32,26,27,256*512,256*512)
    a(f'''v_lshrrev_b32 v3, 5, v0           ; half
    s_lshr_b32 s21, s3, 1
    s_lshl_b32 s21, s21, 5
    s_lshl_b32 s22, s24, 6
    s_add_u32 s21, s21, s22           ; f0
    s_lshl_b32 s22, s21, 1
    v_lshlrev_b32 v4, 3, v3''')
    for G in range(4): a(f'buffer_load_dwordx2 {vr(8+2*G,2)}, v4, s[12:15], s22 offen offset:{16*G}')
    a('s_waitcnt vmcnt(0)')
    k1=hex(f2u(-2*0.7978845608028654*LOG2E)); k2=hex(f2u(0.044715))
    a(f's_mov_b32 s28, {k1}\ns_mov_b32 s29, {k2}')
    for G in range(4):
        for j in range(2):
            a(f'v_lshlrev_b32 v20, 16, v{8+2*G+j}\nv_and_b32 v21, 0xffff0000, v{8+2*G+j}')
            a(f'v_add_f32 v{D+4*G+2*j}, v{D+4*G+2*j}, v20\nv_add_f32 v{D+4*G+2*j+1}, v{D+4*G+2*j+1}, v21')
    for r in range(16): a(f'v_mul_f32 v{20+r}, v{D+r}, v{D+r}')
    for r in range(16): a(f'v_fma_f32 v{20+r}, v{20+r}, s29, 1.0')
    for r in range(16): a(f'v_mul_f32 v{20+r}, v{20+r}, v{D+r}')
    for r in range(16): a(f'v_mul_f32 v{20+r}, s28, v{20+r}')
    for r in range(16): a(f'v_exp_f32 v{20+r}, v{20+r}')
    for r in range(16): a(f'v_add_f32 v{20+r}, 1.0, v{20+r}')
    for r in range(16): a(f'v_rcp_f32 v{20+r}, v{20+r}')
    for r in range(16): a(f'v_mul_f32 v{D+r}, v{D+r}, v{20+r}')
    for k in range(8): a(f'v_cvt_pk_bf16_f32 v{40+k}, v{D+2*k}, v{D+2*k+1}')
    a(f'''v_permlane32_swap_b32 v40, v42
    v_permlane32_swap_b32 v41, v43
    v_permlane32_swap_b32 v44, v46
    v_permlane32_swap_b32 v45, v47
    s_lshl_b32 s22, s25, 1
    s_and_b32 s23, s3, 1
    s_add_u32 s22, s22, s23           ; dt
    s_mul_i32 s22, s22, {224*512}
    s_lshl_b32 s21, s21, 6            ; f0/8*512
    s_add_u32 s22, s22, s21
    s_add_u32 s22, s22, {WS['UT']}
    buffer_store_dwordx4 v[40:43], v1, s[8:11], s22 offen
    buffer_store_dwordx4 v[44:47], v1, s[8:11], s22 offen offset:1024
L_g1_done:
    s_waitcnt vmcnt(0)
    s_endpgm''')

def gen_g2(a, name):
    prolog(a,name,224,'L_g2_done')
    make_srd(a, 12, 'b2', 16); make_srd(a, 16, 'out', 22)
    a(f'''
    s_and_b32 s20, s2, 7
    s_lshr_b32 s21, s2, 3
    s_mul_hi_u32 s22, s21, {(2**32+6)//7}
    s_mul_i32 s24, s22, 7
    s_sub_u32 s25, s21, s24           ; dt2
    s_lshl_b32 s22, s22, 3
    s_add_u32 s24, s22, s20           ; st2 (0..31)
    v_lshlrev_b32 v1, 4, v0
    s_mul_i32 s21, s3, {28*1024}
    s_mul_i32 s26, s25, {2*224*512}
    s_add_u32 s26, s26, s21
    s_add_u32 s26, s26, {WS['UT']}
    s_mul_i32 s27, s24, {2*224*512}
    s_add_u32 s27, s27, s21
    s_add_u32 s27, s27, {WS['W2F']}''')
    D=splitk_core(a,28,26,27,224*512,224*512)
    a(f'''v_and_b32 v2, 31, v0
    v_lshrrev_b32 v3, 5, v0
    s_and_b32 s21, s3, 1
    s_lshl_b32 s21, s21, 5
    s_lshl_b32 s22, s24, 6
    s_add_u32 s21, s21, s22
    v_add_u32 v4, s21, v2             ; token
    v_lshlrev_b32 v5, 1, v4
    buffer_load_ushort v6, v5, s[12:15], 0 offen
    v_mul_u32_u24 v4, 896, v4
    v_lshl_add_u32 v4, v3, 4, v4
    s_lshr_b32 s21, s3, 1
    s_lshl_b32 s21, s21, 6
    s_lshl_b32 s22, s25, 7
    s_add_u32 s21, s21, s22           ; d0*2 bytes
    s_add_u32 s22, s21, {WS['H']}
    buffer_load_dwordx4 v[8:11], v4, s[8:11], s22 offen
    buffer_load_dwordx4 v[12:15], v4, s[8:11], s22 offen offset:32
    ''')
    for q in range(4):
        a(f'v_permlane32_swap_b32 v{D+q}, v{D+4+q}')
        a(f'v_permlane32_swap_b32 v{D+8+q}, v{D+12+q}')
    a('s_waitcnt vmcnt(0)\nv_lshlrev_b32 v6, 16, v6')
    for k in range(8):
        a(f'''v_lshlrev_b32 v20, 16, v{8+k}
        v_and_b32 v21, 0xffff0000, v{8+k}
        v_add_f32 v{D+2*k}, v{D+2*k}, v6
        v_add_f32 v{D+2*k+1}, v{D+2*k+1}, v6
        v_add_f32 v{D+2*k}, v{D+2*k}, v20
        v_add_f32 v{D+2*k+1}, v{D+2*k+1}, v21
        v_cvt_pk_bf16_f32 v{40+k}, v{D+2*k}, v{D+2*k+1}''')
    a('''buffer_store_dwordx4 v[40:43], v4, s[16:19], s21 offen
    buffer_store_dwordx4 v[44:47], v4, s[16:19], s21 offen offset:32
L_g2_done:
    s_waitcnt vmcnt(0)
    s_endpgm''')
if __name__=='__main__':
    import subprocess
    for g,n,v in ((gen_v,'v_kernel',208),(gen_ln2,'ln2_kernel',104),(gen_g1,'g1_kernel',168),(gen_g2,'g2_kernel',168)):
        a=Asm(); g(a,n)
        t=fix_hazards(a.text(),True)
        pr=check_waitcnt(t); print(n,len(pr))
        for p in pr[:6]: print('WAIT?',p)
        open('t.s','w').write('.amdgcn_target "amdgcn-amd-amdhsa--gfx950"\n.text\n'+t+kdesc(n,v))
        print(subprocess.run('clang -x assembler -target amdgcn-amd-amdhsa -mcpu=gfx950 -c t.s -o t.o',shell=True,capture_output=True,text=True).stderr[:3000] or 'assembled')
```

```python
from common import *
LDS_TOK=4*28672
def load_tokens(a, sTB, vL16, src):
    a(f'''s_lshl_b32 s21, s{sTB}, 2
    s_add_u32 s21, s21, s3
    s_mul_i32 s21, s21, 28672
    s_add_u32 s21, s21, {WS[src]}
    s_mul_i32 s22, s3, 28672''')
    for k in range(28):
        a(f'''s_add_u32 m0, s22, {k*1024}
        s_add_u32 s23, s21, {k*1024}
        buffer_load_dwordx4 v{vL16}, s[8:11], s23 offen lds''')

def core_tile(a, D, nseg, vTok, segoff, sW, vL16, Bring, Abuf, swap, first_prefetched, next_sW, NB=7, extra=None):
    def wload(sreg, ks): a(f's_add_u32 s23, s{sreg}, {ks*1024}\nbuffer_load_dwordx4 {vr(Bring+4*(ks%NB),4)}, v{vL16}, s[8:11], s23 offen')
    def aread(ks):
        b=Abuf+16*(ks%2)
        for i in range(nseg): a(f'ds_read_b128 {vr(b+4*i,4)}, v{vTok} offset:{segoff[i]+ks*1024}')
    if not first_prefetched:
        for ks in range(NB): wload(sW,ks)
    aread(0)
    for ks in range(28):
        if ks+1<28: aread(ks+1)
        xn = extra[2] if (extra and extra[1] < ks <= extra[1]+NB) else 0
        a(f's_waitcnt vmcnt({NB-1+xn}) lgkmcnt({nseg if ks+1<28 else 0})')
        b=Abuf+16*(ks%2); w=Bring+4*(ks%NB)
        for i in range(nseg):
            c='0' if ks==0 else vr(D+16*i,16)
            if swap: a(f'v_mfma_f32_32x32x16_bf16 {vr(D+16*i,16)}, {vr(w,4)}, {vr(b+4*i,4)}, {c}')
            else:    a(f'v_mfma_f32_32x32x16_bf16 {vr(D+16*i,16)}, {vr(b+4*i,4)}, {vr(w,4)}, {c}')
        if ks+NB<28: wload(sW,ks+NB)
        elif next_sW is not None: wload(next_sW, ks+NB-28)
        else: a(f'buffer_load_dwordx4 {vr(Bring+4*(ks%NB),4)}, v{vL16}, s[8:11], s{sW} offen')
        if extra and ks==extra[1]: extra[0]()

def gen_u(a, name):
    kheader(a,name)
    a(f'''s_cmp_ge_u32 s2, 256
    s_cbranch_scc1 L_u_done
    v_lshrrev_b32 v1, 6, v0
    v_and_b32 v0, 63, v0
    v_readfirstlane_b32 s3, v1''')
    make_srd(a, 8, 'ws', 16)
    vL16=1; vTok=2; vTok2=3; vOut=4; Bring=8; Abuf=40; D=72; T=200
    a(f'''
    s_and_b32 s20, s2, 7
    s_bfe_u32 s21, s2, 0x10003
    s_lshl_b32 s21, s21, 3
    s_add_u32 s20, s20, s21          ; v
    s_lshr_b32 s24, s2, 4            ; tb
    v_lshlrev_b32 v{vL16}, 4, v0
    v_mov_b32 v{vTok}, v{vL16}''')
    load_tokens(a, 24, vL16, 'XN')
    a(f'''s_mul_i32 s25, s20, 14
    s_add_u32 s26, s25, s3
    s_mul_i32 s26, s26, 28672
    s_add_u32 s26, s26, {WS['BT']}
    s_add_u32 s27, s26, {4*28672}
    s_add_u32 s28, s26, {8*28672}
    s_lshr_b32 s29, s3, 1
    s_add_u32 s29, s29, s25
    s_add_u32 s29, s29, 12
    s_mul_i32 s29, s29, 28672
    s_add_u32 s29, s29, {WS['BT']}
    s_and_b32 s30, s3, 1
    s_mul_i32 s30, s30, {2*28672}
    v_add_u32 v{vTok2}, s30, v{vL16}
    v_and_b32 v5, 31, v0
    v_lshrrev_b32 v6, 5, v0
    v_lshlrev_b32 v{vOut}, 6, v5
    v_lshl_add_u32 v{vOut}, v6, 4, v{vOut}
    s_lshl_b32 s31, s24, 6
    s_add_u32 s31, s31, s20
    s_mul_i32 s31, s31, 28672
    s_add_u32 s31, s31, {WS['U']}
    s_waitcnt vmcnt(0)
    s_barrier''')
    def epi(nseg, s_tileoff_expr, seg_s):
        for i in range(nseg):
            d=D+16*i
            for k in range(8): a(f'v_cvt_pk_bf16_f32 v{T+k}, v{d+2*k}, v{d+2*k+1}')
            a(f'v_permlane32_swap_b32 v{T}, v{T+2}\nv_permlane32_swap_b32 v{T+1}, v{T+3}\nv_permlane32_swap_b32 v{T+4}, v{T+6}\nv_permlane32_swap_b32 v{T+5}, v{T+7}')
            seg_s(i)
            a(f'buffer_store_dwordx4 {vr(T,4)}, v{vOut}, s[8:11], s34 offen')
            a(f'buffer_store_dwordx4 {vr(T+4,4)}, v{vOut}, s[8:11], s34 offen offset:32')
            a('s_nop 1')
    segoff=[i*28672 for i in range(4)]
    a(f'v_add_u32 v7, {2*28672}, v{vL16}')
    def tile(sW,nxt,pref,jl_expr):
        core_tile4(a,D,vTok,7,sW,vL16,Bring,Abuf,False,pref,nxt)
        a(jl_expr)
        epi(4,None,lambda i: a(f's_add_u32 s34, s33, {i*16*28672}'))
    tile(26,27,False,'s_lshl_b32 s33, s3, 11\ns_add_u32 s33, s33, s31')
    tile(27,28,True,'s_add_u32 s33, s3, 4\ns_lshl_b32 s33, s33, 11\ns_add_u32 s33, s33, s31')
    tile(28,29,True,'s_add_u32 s33, s3, 8\ns_lshl_b32 s33, s33, 11\ns_add_u32 s33, s33, s31')
    core_tile(a,D,2,vTok2,[0,28672],29,vL16,Bring,Abuf,False,True,None)
    a(f'''s_lshr_b32 s33, s3, 1
    s_add_u32 s33, s33, 12
    s_lshl_b32 s33, s33, 11
    s_add_u32 s33, s33, s31
    s_and_b32 s35, s3, 1
    s_mul_i32 s35, s35, {2*16*28672}
    s_add_u32 s33, s33, s35''')
    epi(2,None,lambda i: a(f's_add_u32 s34, s33, {i*16*28672}'))
    a('L_u_done:\ns_waitcnt vmcnt(0)\ns_endpgm')

def core_tile4(a, D, vTokA, vTokB, sW, vL16, Bring, Abuf, swap, first_prefetched, next_sW, NB=7, extra=None):
    def wload(sreg, ks): a(f's_add_u32 s23, s{sreg}, {ks*1024}\nbuffer_load_dwordx4 {vr(Bring+4*(ks%NB),4)}, v{vL16}, s[8:11], s23 offen')
    def aread(ks):
        b=Abuf+16*(ks%2)
        for i in range(4): a(f'ds_read_b128 {vr(b+4*i,4)}, v{vTokA if i<2 else vTokB} offset:{(i%2)*28672+ks*1024}')
    if not first_prefetched:
        for ks in range(NB): wload(sW,ks)
    aread(0)
    for ks in range(28):
        if ks+1<28: aread(ks+1)
        xn = extra[2] if (extra and extra[1] < ks <= extra[1]+NB) else 0
        a(f's_waitcnt vmcnt({NB-1+xn}) lgkmcnt({4 if ks+1<28 else 0})')
        b=Abuf+16*(ks%2); w=Bring+4*(ks%NB)
        for i in range(4):
            c='0' if ks==0 else vr(D+16*i,16)
            if swap: a(f'v_mfma_f32_32x32x16_bf16 {vr(D+16*i,16)}, {vr(w,4)}, {vr(b+4*i,4)}, {c}')
            else:    a(f'v_mfma_f32_32x32x16_bf16 {vr(D+16*i,16)}, {vr(b+4*i,4)}, {vr(w,4)}, {c}')
        if ks+NB<28: wload(sW,ks+NB)
        elif next_sW is not None: wload(next_sW, ks+NB-28)
        else: a(f'buffer_load_dwordx4 {vr(Bring+4*(ks%NB),4)}, v{vL16}, s[8:11], s{sW} offen')
        if extra and ks==extra[1]: extra[0]()
if __name__=='__main__':
    import subprocess
    a=Asm(); gen_u(a,'u_kernel')
    t=fix_hazards(a.text(),True)
    for p in check_waitcnt(t)[:20]: print('WAIT?',p)
    open('u.s','w').write('.amdgcn_target "amdgcn-amd-amdhsa--gfx950"\n.text\n'+t+kdesc('u_kernel',208))
    print(subprocess.run('clang -x assembler -target amdgcn-amd-amdhsa -mcpu=gfx950 -c u.s -o u.o',shell=True,capture_output=True,text=True).stderr[:3000] or 'assembled')

def gen_x(a, name):
    kheader(a,name)
    a(f'''s_cmp_ge_u32 s2, 256
    s_cbranch_scc1 L_x_done
    v_lshrrev_b32 v1, 6, v0
    v_and_b32 v0, 63, v0
    v_readfirstlane_b32 s3, v1''')
    make_srd(a, 8, 'ws', 16)
    vL16=1; vTok=2; vTok2=3; vOut=4; vMk=5; vOutM=6
    Abuf=8; D=40; T=104
    Bring=140
    KX=168; KM=200
    SX=256; SM=256+64
    a(f'''
    s_and_b32 s20, s2, 7
    s_bfe_u32 s21, s2, 0x10003
    s_lshl_b32 s21, s21, 3
    s_add_u32 s20, s20, s21          ; h
    s_lshr_b32 s24, s2, 4            ; tb
    v_lshlrev_b32 v{vL16}, 4, v0
    v_mov_b32 v{vTok}, v{vL16}''')
    load_tokens(a, 24, vL16, 'XN')
    a(f'''s_mul_i32 s25, s20, 14
    s_add_u32 s26, s25, s3
    s_mul_i32 s26, s26, 28672
    s_add_u32 s26, s26, {WS['AT']}
    s_add_u32 s27, s26, {4*28672}
    s_add_u32 s28, s26, {8*28672}
    s_lshr_b32 s29, s3, 1
    s_add_u32 s29, s29, s25
    s_add_u32 s29, s29, 12
    s_mul_i32 s29, s29, 28672
    s_add_u32 s29, s29, {WS['AT']}
    s_and_b32 s30, s3, 1
    s_mul_i32 s30, s30, {2*28672}
    v_add_u32 v{vTok2}, s30, v{vL16}
    v_add_u32 v7, {2*28672}, v{vL16}
    v_and_b32 v136, 31, v0             ; n32 (token)
    v_lshrrev_b32 v137, 5, v0          ; half
    v_lshlrev_b32 v{vOut}, 6, v136
    v_lshl_add_u32 v{vOut}, v137, 4, v{vOut}
    v_lshlrev_b32 v{vOutM}, 4, v136
    v_lshl_add_u32 v{vOutM}, v137, 3, v{vOutM}
    v_and_b32 v138, 7, v136
    v_lshlrev_b32 v138, 4, v138
    v_lshl_add_u32 v{vMk}, v137, 7, v138
    s_lshl_b32 s31, s24, 2
    s_mul_i32 s35, s31, 28672
    s_add_u32 s35, s35, {WS['XQ']}
    s_mul_i32 s36, s31, 7168
    s_add_u32 s36, s36, {WS['MEMQ']}
    v_lshlrev_b32 v138, 2, v137
    v_sub_u32 v138, v136, v138         ; t - 4half''')
    for r in range(16):
        C=8*(r//4)+r%4
        a(f'v_cmp_gt_i32 s[{40+2*r}:{41+2*r}], {C}, v138')
    for i in range(128): a(f'v_accvgpr_write_b32 a{i}, 0')
    a('s_waitcnt vmcnt(0)\ns_barrier')
    def keys_load(sJ, segs0, nseg):
        a(f's_lshl_b32 s37, s{sJ}, 11\ns_add_u32 s37, s37, s35')
        a(f's_lshl_b32 s38, s{sJ}, 9\ns_add_u32 s38, s38, s36')
        if segs0 is not None:
            a(f's_mul_i32 s39, s{segs0}, 28672\ns_add_u32 s37, s37, s39\ns_mul_i32 s39, s{segs0}, 7168\ns_add_u32 s38, s38, s39')
        for i in range(nseg):
            for u in range(2):
                a(f's_add_u32 s39, s37, {i*28672+u*1024}\nbuffer_load_dwordx4 {vr(KX+8*i+4*u,4)}, v{vL16}, s[8:11], s39 offen')
                a(f's_add_u32 s39, s38, {i*7168+u*256}\nbuffer_load_dwordx4 {vr(KM+8*i+4*u,4)}, v{vMk}, s[8:11], s39 offen')
    def stage2(nseg, accsel):
        for i in range(nseg):
            d=D+16*i
            for k in range(8): a(f'v_cvt_pk_bf16_f32 v{T+8*i+k}, v{d+2*k}, v{d+2*k+1}')
        a('s_waitcnt vmcnt(7)')
        for i in range(nseg):
            for u in range(2):
                sx=accsel(SX,i); sm=accsel(SM,i)
                a(f'v_mfma_f32_32x32x16_bf16 {sx}, {vr(KX+8*i+4*u,4)}, {vr(T+8*i+4*u,4)}, {sx}')
                a(f'v_mfma_f32_32x32x16_bf16 {sm}, {vr(KM+8*i+4*u,4)}, {vr(T+8*i+4*u,4)}, {sm}')
    full=lambda base,i: rr(base+16*i,16)
    a('s_mov_b32 s32, s3')
    core_tile4(a,D,vTok,7,26,vL16,Bring,Abuf,True,False,27,extra=(lambda: keys_load(32,None,4),4,16))
    stage2(4,full)
    a('s_add_u32 s32, s3, 4')
    core_tile4(a,D,vTok,7,27,vL16,Bring,Abuf,True,True,28,extra=(lambda: keys_load(32,None,4),4,16))
    stage2(4,full)
    a('s_add_u32 s32, s3, 8')
    core_tile4(a,D,vTok,7,28,vL16,Bring,Abuf,True,True,29,extra=(lambda: keys_load(32,None,4),4,16))
    stage2(4,full)
    a('s_lshr_b32 s32, s3, 1\ns_add_u32 s32, s32, 12\ns_and_b32 s33, s3, 1\ns_lshl_b32 s33, s33, 1')
    core_tile(a,D,2,vTok2,[0,28672],29,vL16,Bring,Abuf,True,True,None,extra=(lambda: keys_load(32,33,2),4,8))
    a('s_cmp_eq_u32 s33, 0\ns_cbranch_scc0 L_x_hi')
    stage2(2,lambda b,i: rr(b+16*i,16))
    a('s_branch L_x_red\nL_x_hi:')
    stage2(2,lambda b,i: rr(b+16*(i+2),16))
    a('L_x_red:')
    a('s_nop 7\ns_nop 7\ns_waitcnt vmcnt(0) lgkmcnt(0)\ns_barrier')
    a(f's_mul_i32 s33, s3, 5120\nv_add_u32 v8, s33, v{vL16}')
    a(f'v_add_u32 v9, {2*20480}, v8')
    for sg in range(4):
        vb=8 if sg<2 else 9; o=(sg%2)*20480
        for k in range(4): a(f'ds_write_b128 v{vb}, {ar(16*sg+4*k,4)} offset:{o+k*1024}')
        a(f'ds_write_b128 v{vb}, {ar(64+16*sg,4)} offset:{o+4096}')
    a(f's_waitcnt lgkmcnt(0)\ns_barrier\ns_mul_i32 s33, s3, 20480\nv_add_u32 v8, s33, v{vL16}')
    S=40
    for w in range(4):
        dst=S if w==0 else 60
        for k in range(5): a(f'ds_read_b128 {vr(dst+4*k,4)}, v8 offset:{w*5120+k*1024}')
        if w>0:
            a('s_waitcnt lgkmcnt(0)')
            for k in range(20): a(f'v_add_f32 v{S+k}, v{S+k}, v{60+k}')
    a('v_mov_b32 v9, 0xff800000')
    for r in range(16): a(f'v_cndmask_b32 v{S+r}, v{S+r}, v9, s[{40+2*r}:{41+2*r}]')
    a(f'v_max3_f32 v10, v{S}, v{S+1}, v{S+2}')
    for k in range(3,19,2): a(f'v_max3_f32 v10, v10, v{S+k}, v{S+k+1}')
    a(f'''v_max_f32 v10, v10, v{S+19}
    v_mov_b32 v11, v10
    v_permlane32_swap_b32 v10, v11
    v_max_f32 v10, v10, v11''')
    for k in range(20): a(f'v_sub_f32 v{S+k}, v{S+k}, v10')
    for k in range(20): a(f'v_exp_f32 v{S+k}, v{S+k}')
    a(f'v_add_f32 v10, v{S}, v{S+1}\nv_add_f32 v12, v{S+2}, v{S+3}')
    for k in range(4,20,2): a(f'v_add_f32 v10, v10, v{S+k}\nv_add_f32 v12, v12, v{S+k+1}')
    a('''v_add_f32 v10, v10, v12
    v_mov_b32 v11, v10
    v_permlane32_swap_b32 v10, v11
    v_add_f32 v10, v10, v11
    v_rcp_f32 v10, v10''')
    for k in range(20): a(f'v_mul_f32 v{S+k}, v{S+k}, v10')
    P=64
    for k in range(10): a(f'v_cvt_pk_bf16_f32 v{P+k}, v{S+2*k}, v{S+2*k+1}')
    a(f'''v_permlane32_swap_b32 v{P}, v{P+2}
    v_permlane32_swap_b32 v{P+1}, v{P+3}
    v_permlane32_swap_b32 v{P+4}, v{P+6}
    v_permlane32_swap_b32 v{P+5}, v{P+7}
    s_lshl_b32 s33, s24, 2
    s_add_u32 s33, s33, s3             ; segment
    s_lshl_b32 s33, s33, 4
    s_add_u32 s33, s33, s20            ; s*16+h
    s_lshl_b32 s34, s33, 11
    s_add_u32 s34, s34, {WS['PX']}
    s_lshl_b32 s33, s33, 9
    s_add_u32 s33, s33, {WS['PXM']}
    buffer_store_dwordx4 {vr(P,4)}, v{vOut}, s[8:11], s34 offen
    buffer_store_dwordx4 {vr(P+4,4)}, v{vOut}, s[8:11], s34 offen offset:32
    buffer_store_dwordx2 {vr(P+8,2)}, v{vOutM}, s[8:11], s33 offen
L_x_done:
    s_waitcnt vmcnt(0)
    s_endpgm''')
```

```python
import sys
sys.path.insert(0,'gen')
from asmlib import *
import common, prep, tsgemm, tail, chain
NAME='sequential_preLN__memory_aug_recurrent_mem_tr__mixer_token_mlp__prompt'
def build(path, chain_opts=None):
    K=[('prep_kernel',prep.gen_prep,216,prep.NWG,prep.LDS),
       ('u_kernel',tsgemm.gen_u,208,256,tsgemm.LDS_TOK),
       ('chain_kernel',lambda a,n: chain.gen_chain(a,n,**(chain_opts or dict(n1=0))),512,256,32768),
       ('x_kernel',tsgemm.gen_x,384,256,tsgemm.LDS_TOK),
       ('v_kernel',tail.gen_v,208,256,tail.LDS_V),
       ('ln2_kernel',tail.gen_ln2,104,64,tail.LDS_L),
       ('g1_kernel',tail.gen_g1,168,224,tail.LDS_G),
       ('g2_kernel',tail.gen_g2,168,224,tail.LDS_G)]
    hdr='; generated by gen/build.py (own generator scripts)\n'
    for n,g,v,nwg,lds in K: hdr+=f'; @launch kernel={n} grid=({nwg},1,1) block=(256,1,1) lds={lds}\n'
    src=hdr+'.amdgcn_target "amdgcn-amd-amdhsa--gfx950"\n.text\n'
    for n,g,v,nwg,lds in K:
        a=Asm(); g(a,n); t=fix_hazards(a.text())
        src+=t+common.kdesc(n,v)
    open(path,'w').write(src)
    print(path,len(src),'bytes')
if __name__=='__main__':
    build(f'cdna_kernels/{NAME}.s')
```
